```python
import torch

def _softmax(x, axis=-1):
    return torch.softmax(x, dim=axis)
def _gelu(x):
    return torch.nn.functional.gelu(x, approximate="tanh")
def _silu(x):
    return torch.nn.functional.silu(x)
def _sigmoid(x):
    return torch.sigmoid(x)
def _layernorm(x, axis=-1, eps=1e-5):
    m = x.mean(dim=axis, keepdim=True)
    v = x.var(dim=axis, keepdim=True, unbiased=False)
    return (x - m) / torch.sqrt(v + eps)
def _scatter_add(tgt, idx, src, axis=0):
    return tgt.clone().index_add_(axis, idx, src)
def _segment_sum(src, seg, n):
    out = torch.zeros((n,) + src.shape[1:], dtype=src.dtype)
    return out.index_add_(0, seg, src)
def _pad(x, pw):
    flat = tuple(v for pair in reversed(pw) for v in pair)
    return torch.nn.functional.pad(x, flat)

kernel_name = 'gated_mix__mha_block__linear_attn_block__prompt'

def setup_inputs():

    _w = (lambda a: (lambda t: t.to(torch.bfloat16) if t.is_floating_point() else t)(torch.as_tensor(a)))
    def _A_setup():
        B, S, D, H = 1, 2048, 448, 16
        return {
            "x": _w((lambda *s: torch.randn(*s, dtype=torch.bfloat16) * 0.05)(B, S, D)),
            "wqkv": _w((lambda *s: torch.randn(*s, dtype=torch.bfloat16) * 0.8)(D, 3 * D)),
            "wo": _w((lambda *s: torch.randn(*s, dtype=torch.bfloat16) * 0.05)(D, D)),
        }
    _A_in = _A_setup()

    def _B_setup():
        B, S, D = 1, 2048, 448
        return {
            "x": _w((lambda *s: torch.randn(*s, dtype=torch.bfloat16) * 0.05)(B, S, D)),
            "wqkv": _w((lambda *s: torch.randn(*s, dtype=torch.bfloat16) * 0.8)(D, 3 * D)),
            "wo": _w((lambda *s: torch.randn(*s, dtype=torch.bfloat16) * 0.1)(D, D)),
        }
    _B_in = _B_setup()

    return {
        "A_x": _A_in["x"],
        "A_wqkv": _A_in["wqkv"],
        "A_wo": _A_in["wo"],
        "B_x": _B_in["x"],
        "B_wqkv": _B_in["wqkv"],
        "B_wo": _B_in["wo"],
        "gate_w": _w((lambda *s: torch.randn(*s, dtype=torch.bfloat16) * 0.05)(448) * 16.0),
    }

def reference(A_x, A_wqkv, A_wo, B_x, B_wqkv, B_wo, gate_w):
    def _A_ref(x, wqkv, wo):
        B, S, D = x.shape
        H = 16
        Dh = D // H
        qkv = (lambda x, *d: x.permute(*d))((x @ wqkv).reshape(B, S, 3, H, Dh), 2, 0, 3, 1, 4)
        q, k, v = qkv[0], qkv[1], qkv[2]
        scores = torch.einsum("bhqd,bhkd->bhqk", q, k) * (Dh ** -0.5)
        p = _softmax(scores, axis=-1)
        o = torch.einsum("bhqk,bhkd->bhqd", p, v)
        return (lambda x, *d: x.permute(*d))(o, 0, 2, 1, 3).reshape(B, S, D) @ wo

    def _B_ref(x, wqkv, wo):
        B, S, D = x.shape
        H = 16; Dh = D // H
        qkv = (lambda x, *d: x.permute(*d))((x @ wqkv).reshape(B, S, 3, H, Dh), 2, 0, 3, 1, 4)
        q, k, v = qkv[0], qkv[1], qkv[2]
        phi = lambda t: torch.where(t > 0, t + 1, torch.exp(t)) + 1e-6
        pq, pk = phi(q), phi(k)
        kv = torch.einsum("bhsd,bhse->bhde", pk, v)
        z = torch.einsum("bhsd->bhd", pk)
        num = torch.einsum("bhqd,bhde->bhqe", pq, kv)
        den = torch.einsum("bhqd,bhd->bhq", pq, z)[..., None] + 1e-6
        o = num / den
        return (lambda x, *d: x.permute(*d))(o, 0, 2, 1, 3).reshape(B, S, D) @ wo

    x = A_x
    g = _sigmoid((x * gate_w).sum(-1, keepdims=True))
    a = _A_ref(x, A_wqkv, A_wo)
    b = _B_ref(x, B_wqkv, B_wo)
    return g * a + (1 - g) * b
```

```python
import sys
from common import *
HEADER = open("gated_mix__mha_block__linear_attn_block__prompt.s.ref").read().split("; Override launch")[0]
def assemble(kernels):
    out = HEADER
    for (name, text, desc, grid, block, lds) in kernels:
        out += f"; @launch kernel={name} grid=({grid},1,1) block=({block},1,1) lds={lds}\n"
    out += '.amdgcn_target "amdgcn-amd-amdhsa--gfx950"\n.text\n'
    seen = set()
    for (name, text, desc, *_ ) in kernels:
        if name in seen: continue
        seen.add(name); out += text
    out += '.section .rodata,"a"\n'
    seen = set()
    for (name, text, desc, *_ ) in kernels:
        if name in seen: continue
        seen.add(name); out += desc
    return out

def assemble_single(name, text, desc, grid, block, lds):
    return HEADER + f"; @launch grid=({grid},1,1) block=({block},1,1) lds={lds}\n" + '.amdgcn_target "amdgcn-amd-amdhsa--gfx950"\n.text\n' + text + '.section .rodata,"a"\n' + desc
```

```python
from dsl import *
import math
S_, D_, H_, DH = 2048, 448, 16, 28
XROW, WROW = 896, 2688
X_BYTES = S_ * XROW
W_BYTES = D_ * WROW
WO_BYTES = D_ * XROW
OUT_BYTES = S_ * XROW
WS_KV  = 0x000000
WS_QA  = 0x400000
WS_PQ  = 0x600000
WS_KVP = 0x800000
WS_G   = 0x900000
WS_FL  = 0x908000
WS_OA  = 0xA00000
WS_OB  = 0xC00000
WS_ST  = 0xE00000
WS_USED = 0xF00000
LOG2E = 1.4426950408889634
QSCALE = LOG2E / math.sqrt(DH)
import struct
def f32bits(x): return struct.unpack("<I", struct.pack("<f", x))[0]
def hx(x): return f"0x{x & 0xffffffff:x}"
ONES = 0x3F803F80
MFMA = "v_mfma_f32_32x32x16_bf16"

def srd(A, base, lo, hi, nbytes):
    A(f"s_mov_b32 s{base}, {lo}")
    A(f"s_mov_b32 s{base+1}, {hi}")
    A(f"s_mov_b32 s{base+2}, {hx(nbytes)}")
    A(f"s_mov_b32 s{base+3}, 0x20000")

def kernel_head(name):
    return f""".globl {name}
.p2align 8
.type {name},@function
{name}:
"""
def kernel_desc(name, nvgpr, nagpr, nsgpr=102):
    acc = (nvgpr + 3) // 4 * 4
    total = acc + nagpr if nagpr else nvgpr
    return f""".p2align 6
.amdhsa_kernel {name}
  .amdhsa_next_free_vgpr {total}
  .amdhsa_next_free_sgpr {nsgpr}
  .amdhsa_accum_offset {acc}
  .amdhsa_group_segment_fixed_size 0
  .amdhsa_kernarg_size 80
  .amdhsa_user_sgpr_count 2
  .amdhsa_user_sgpr_kernarg_segment_ptr 1
  .amdhsa_system_sgpr_workgroup_id_x 1
  .amdhsa_float_denorm_mode_32 3
.end_amdhsa_kernel
"""

def interleave(A, mfmas, fillers, per=None):
    n = len(mfmas); k = 0
    for i, m in enumerate(mfmas):
        A(m)
        left = len(fillers) - k
        take = -(-left // (n - i)) if per is None else min(left, per)
        for g in fillers[k:k + take]:
            for x in g: A(x)
        k += take
    for g in fillers[k:]:
        for x in g: A(x)

class Stamps:
    def __init__(self, A, on, kidx):
        self.A, self.on, self.n, self.kidx, self.names = A, on, 0, kidx, []
    def __call__(self, name, real=False):
        if not self.on: return
        self.A(f"{'s_memrealtime' if real else 's_memtime'} s[{64+2*self.n}:{65+2*self.n}]"); self.n += 1; self.names.append(name)
    def flush(self, sW, W_, t0, t1, T0):
        if not self.on: return
        A = self.A
        A("s_waitcnt lgkmcnt(0)")
        A(f"s_lshl_b32 s{T0}, s2, 2"); A(f"s_add_u32 s{T0}, s{T0}, s{W_}"); A(f"s_lshl_b32 s{T0}, s{T0}, 6"); A(f"s_add_u32 s{T0}, s{T0}, {hx(WS_ST + self.kidx*0x10000)}")
        A(f"v_mov_b32 {t0}, 0")
        for i in range(self.n):
            A(f"v_mov_b32 {t1}, s{64+2*i}")
            A(f"buffer_store_dword {t1}, {t0}, s[{sW}:{sW+3}], s{T0} offen offset:{4*i}")
```

```python
import re

def v(i): return f"v{i}"
def a(i): return f"a{i}"
def s(i): return f"s{i}"
def vr(i, n): return f"v[{i}:{i+n-1}]" if n > 1 else f"v{i}"
def ar(i, n): return f"a[{i}:{i+n-1}]" if n > 1 else f"a{i}"
def sr(i, n): return f"s[{i}:{i+n-1}]" if n > 1 else f"s{i}"
def R(kind, i, n=1):
    return {"v": vr, "a": ar, "s": sr}[kind](i, n)

class Reg:
    def __init__(self, kind, base, n=1):
        self.kind, self.base, self.n = kind, base, n
    def __getitem__(self, k):
        if isinstance(k, slice):
            st = k.start or 0; en = self.n if k.stop is None else k.stop
            assert 0 <= st < en <= self.n, (st, en, self.n)
            return Reg(self.kind, self.base + st, en - st)
        assert 0 <= k < self.n, (k, self.n)
        return Reg(self.kind, self.base + k, 1)
    def __str__(self): return R(self.kind, self.base, self.n)
    __repr__ = __str__
    def __format__(self, spec): return str(self)

class Alloc:
    def __init__(self, kind, start, limit):
        self.kind, self.next, self.limit = kind, start, limit
        self.high = start
    def __call__(self, n=1, align=1):
        b = (self.next + align - 1) // align * align
        assert b + n <= self.limit, f"out of {self.kind} regs: need {b+n} > {self.limit}"
        self.next = b + n
        self.high = max(self.high, self.next)
        return Reg(self.kind, b, n)
    def mark(self): return self.next
    def reset(self, m): self.next = m

REG_RE = re.compile(r"\b([vas])(?:(\d+)\b|\[(\d+):(\d+)\])")
def regs_of(op):
    out = []
    for m in REG_RE.finditer(op):
        k = m.group(1)
        if m.group(2) is not None: out.append((k, int(m.group(2))))
        else: out += [(k, i) for i in range(int(m.group(3)), int(m.group(4)) + 1)]
    if re.search(r"\bvcc\b", op): out += [("s", "vcc")]
    if re.search(r"\bvcc_lo\b|\bvcc_hi\b", op): out += [("s", "vcc")]
    if re.search(r"\bexec\b|\bexec_lo\b|\bexec_hi\b", op): out += [("s", "exec")]
    if re.search(r"\bm0\b", op): out += [("s", "m0")]
    return out

TRANS = ("v_exp_f32", "v_log_f32", "v_rcp_f32", "v_rsq_f32", "v_sqrt_f32", "v_sin_f32", "v_cos_f32")

class Ins:
    def __init__(self, text):
        self.text = text
        t = text.split(";")[0].strip()
        self.mn = t.split()[0]
        rest = t[len(self.mn):].strip()
        ops = [o.strip() for o in re.split(r",(?![^\[]*\])", rest)] if rest else []
        self.ops = ops
        mn = self.mn
        self.is_mfma = mn.startswith("v_mfma")
        self.is_valu = mn.startswith("v_") and not self.is_mfma
        self.is_trans = any(mn.startswith(x) for x in TRANS)
        self.is_vmem = mn.startswith(("buffer_", "global_"))
        self.is_ds = mn.startswith("ds_")
        self.is_salu = mn.startswith("s_")
        self.w, self.r = [], []
        self.srcc = []
        if self.is_mfma:
            self.w = regs_of(ops[0]); self.ab = regs_of(ops[1]) + regs_of(ops[2]); self.srcc = regs_of(ops[3].split()[0])
            self.r = self.ab + self.srcc
            self.passes = 8 if "32x32" in mn else 4
        elif self.is_valu:
            if mn.startswith("v_cmp"):
                self.w = regs_of(ops[0]); self.r = sum((regs_of(o) for o in ops[1:]), [])
                if mn.startswith("v_cmpx"): self.w += [("s", "exec")]
            elif mn.startswith("v_permlane32_swap") or mn.startswith("v_permlane16_swap") or mn.startswith("v_swap"):
                self.w = regs_of(ops[0]) + regs_of(ops[1]); self.r = list(self.w)
            elif mn.startswith(("v_add_co", "v_sub_co", "v_addc_co", "v_subb_co")):
                self.w = regs_of(ops[0]) + regs_of(ops[1]); self.r = sum((regs_of(o) for o in ops[2:]), [])
            else:
                self.w = regs_of(ops[0]); self.r = sum((regs_of(o) for o in ops[1:]), [])
                if mn.startswith(("v_fmac", "v_writelane", "v_dot2c")): self.r += self.w
        elif self.is_vmem:
            lds = re.search(r"\blds\b", t) is not None or "_lds_" in mn
            self.lds = lds
            if "load" in mn and not lds:
                self.w = regs_of(ops[0]); self.r = sum((regs_of(o) for o in ops[1:]), [])
            else:
                self.r = sum((regs_of(o) for o in ops), [])
                if lds: self.r += [("s", "m0")]
            self.store_data = []
            if "store" in mn and ("x4" in mn or "x3" in mn):
                self.store_data = regs_of(ops[0]) if mn.startswith("buffer_") else regs_of(ops[1])
        elif self.is_ds:
            if mn.startswith(("ds_read", "ds_bpermute", "ds_permute", "ds_swizzle")):
                self.w = regs_of(ops[0]); self.r = sum((regs_of(o) for o in ops[1:]), [])
            else:
                self.r = sum((regs_of(o) for o in ops), [])
        elif self.is_salu:
            if mn.startswith(("s_cmp", "s_waitcnt", "s_nop", "s_barrier", "s_branch", "s_cbranch", "s_endpgm", "s_setprio", "s_sleep", "s_bitcmp")):
                self.r = sum((regs_of(o) for o in ops), [])
            else:
                self.w = regs_of(ops[0]) if ops else []; self.r = sum((regs_of(o) for o in ops[1:]), [])
                if "saveexec" in mn: self.w += [("s", "exec")]
        self.states = 1
        if mn == "s_nop": self.states = int(ops[0]) + 1

def need_states(p, c):
    n = 0
    pw, cr, cw = set(p.w), set(c.r), set(c.w)
    vec = lambda S: {x for x in S if x[0] in "va"}
    sca = lambda S: {x for x in S if x[0] == "s"}
    if p.is_mfma:
        P = p.passes
        if c.is_mfma:
            if pw & set(c.ab): n = max(n, {4: 8, 8: 12}[P])
            if pw & set(c.srcc):
                if not (p.w == c.srcc and p.passes == c.passes): n = max(n, {4: 6, 8: 10}[P])
            elif pw & cw and p.w != c.w: n = max(n, {4: 6, 8: 10}[P])
        else:
            if pw & (cr | cw): n = max(n, {4: 8, 8: 12}[P])
            if c.is_valu and set(p.srcc) & cw: n = max(n, {4: 3, 8: 7}[P])
    if p.is_valu:
        if c.is_mfma and vec(pw) & cr: n = max(n, 2)
        if c.is_mfma and ("s", "exec") in pw: n = max(n, 4)
        if p.is_trans and c.is_valu and not c.is_trans and pw & cr: n = max(n, 1)
        if c.mn.startswith(("v_readlane", "v_readfirstlane")) and vec(pw) & cr: n = max(n, 1)
        if c.mn.startswith("v_permlane") and vec(pw) & cr: n = max(n, 2)
        if c.is_valu and "dpp" in c.text and vec(pw) & cr: n = max(n, 2)
        if c.is_valu and ("row_" in c.text or "quad_perm" in c.text) and vec(pw) & cr: n = max(n, 2)
        if c.is_vmem and sca(pw) & cr: n = max(n, 5)
        if c.is_valu and sca(pw) & cr: n = max(n, 2)
        if c.mn.startswith(("v_readlane", "v_writelane")) and sca(pw) & cr: n = max(n, 4)
        if ("s", "exec") in pw and c.mn.startswith(("v_readlane", "v_readfirstlane", "v_writelane", "v_permlane")): n = max(n, 4)
        if ("sdwa" in p.mn or "op_sel" in p.text and not p.mn.startswith("v_pk")) and c.is_valu and pw & (cr | cw): n = max(n, 1)
    if p.is_vmem and getattr(p, "store_data", None):
        if set(p.store_data) & cw: n = max(n, 2 if c.is_valu else 1)
    if p.is_salu and ("s", "m0") in pw and c.is_vmem and getattr(c, "lds", False): n = max(n, 1)
    return n

class Asm:
    def __init__(self):
        self.lines = []
    def __call__(self, text=""):
        for ln in text.split("\n"):
            ln = ln.rstrip()
            if ln.strip(): self.lines.append(ln if ln.strip().endswith(":") or ln.strip().startswith((".", ";")) else "    " + ln.strip())
    def label(self, name): self.lines.append(name + ":")
    def text(self): return "\n".join(self.lines) + "\n"

def check_hazards(text, verbose=True):
    ins = []
    for n, ln in enumerate(text.split("\n"), 1):
        t = ln.split(";")[0].strip()
        if not t or t.endswith(":") or t.startswith("."): continue
        I = Ins(t); I.line = n; ins.append(I)
    bad = 0
    for i, c in enumerate(ins):
        dist = 0
        for j in range(i - 1, max(-1, i - 24), -1):
            p = ins[j]
            if p.mn in ("s_endpgm", "s_branch"): break
            need = need_states(p, c)
            if need > dist:
                bad += 1
                if verbose: print(f"HAZARD line {c.line}: '{c.text}' needs {need} states after line {p.line}: '{p.text}' (has {dist})")
            dist += p.states
            if dist >= 20: break
    return bad

class VmQ:
    def __init__(self): self.q = []
    def issue(self, tag): self.q.append(tag)
    def wait_for(self, tags):
        if isinstance(tags, str): tags = [tags]
        last = -1
        for i, t in enumerate(self.q):
            if t in tags: last = i
        n = len(self.q) - 1 - last
        self.q = self.q[last + 1:]
        return n if last >= 0 else None
```

```python
from common import *

SLOT = 40960
def gen_k1(name="qkv_kernel", rot=True, stamps=False):
    A = Asm()
    V = Alloc("v", 1, 256)
    sX, sM, sP, sG, sW = 16, 20, 24, 28, 32
    W_, R_, J_, QB, KC, XB, WB_, T0, T1, T2, A_, B_, LX, LM, LP = 36, 37, 38, 39, 40, 41, 42, 43, 44, 45, 46, 47, 48, 49, 50
    C0 = 51
    MK = 52
    KC0 = 54
    lane = V(); t0 = V(); t1 = V(); t2 = V(); t3 = V()
    vXA = V(); vXB = V(); vM = V(); vP = V(); vL16 = V()
    vXr = V(4); vT = V(3); vGa = V(); vG = V(7)
    Xf = [V(8, 2), V(8, 2)]
    Wf = [V(12, 2), V(12, 2)]
    acc = [[V(16, 2) for t in range(3)] for rl in range(2)]
    ob = [[V(8, 2) for t in range(3)] for rl in range(2)]
    A(kernel_head(name))
    A("s_cmp_ge_u32 s2, 256")
    A(f"s_cbranch_scc1 L_{name}_end")
    A("s_load_dwordx4 s[4:7], s[0:1], 0")
    A("s_load_dwordx2 s[8:9], s[0:1], 32")
    A("s_load_dwordx2 s[10:11], s[0:1], 48")
    A("s_load_dwordx2 s[12:13], s[0:1], 72")
    A(f"v_lshrrev_b32 {t0}, 6, v0")
    A(f"v_and_b32 {lane}, 63, v0")
    A(f"v_readfirstlane_b32 s{W_}, {t0}")
    A(f"s_and_b32 s{J_}, s2, 3")
    A(f"s_lshr_b32 s{T0}, s2, 3")
    A(f"s_and_b32 s{R_}, s{T0}, 3")
    A(f"s_lshr_b32 s{T1}, s{T0}, 2")
    A(f"s_bfe_u32 s{QB}, s2, 0x10002")
    A(f"s_lshl_b32 s{QB}, s{QB}, 3")
    A(f"s_add_u32 s{QB}, s{QB}, s{T1}")
    if rot:
        A(f"s_mul_i32 s{T1}, s2, 9363")
        A(f"s_lshr_b32 s{T1}, s{T1}, 16")
        A(f"s_mul_i32 s{T1}, s{T1}, 7")
        A(f"s_sub_u32 s{KC}, s2, s{T1}")
    else:
        A(f"s_mov_b32 s{KC}, 0")
    A(f"s_mov_b32 s{KC0}, s{KC}")
    A(f"s_and_b32 s{A_}, s{W_}, 1")
    A(f"s_lshr_b32 s{B_}, s{W_}, 1")
    A(f"s_lshl_b32 s{T0}, s{QB}, 2")
    A(f"s_add_u32 s{T0}, s{T0}, s{W_}")
    A(f"s_mul_i32 s{XB}, s{T0}, {32*XROW}")
    A(f"s_mul_i32 s{WB_}, s{W_}, {16*WROW}")
    A(f"s_lshl_b32 s{LX}, s{W_}, 12")
    A(f"s_add_u32 s{LM}, s{LX}, 16384")
    A(f"s_lshl_b32 s{LP}, s{W_}, 11")
    A(f"s_add_u32 s{LP}, s{LP}, 32768")
    A(f"v_lshrrev_b32 {t0}, 3, {lane}")
    A(f"v_and_b32 {t1}, 7, {lane}")
    A(f"v_xor_b32 {t2}, {t0}, {t1}")
    A(f"v_lshlrev_b32 {t2}, 4, {t2}")
    A(f"v_mul_u32_u24 {t3}, {XROW}, {t0}")
    A(f"v_add_u32 {vXA}, {t2}, {t3}")
    A(f"v_xor_b32 {vXB}, 16, {vXA}")
    A(f"v_lshlrev_b32 {t2}, 1, {t0}")
    A(f"v_and_b32 {t2}, 4, {t2}")
    A(f"v_xor_b32 {t2}, {t2}, {t1}")
    A(f"v_min_u32 {t2}, 6, {t2}")
    A(f"v_lshlrev_b32 {t2}, 4, {t2}")
    A(f"v_mul_u32_u24 {t3}, {WROW}, {t0}")
    A(f"s_lshl_b32 s{T0}, s{J_}, 1")
    A(f"s_and_b32 s{T1}, s{R_}, 1")
    A(f"s_add_u32 s{T0}, s{T0}, s{T1}")
    A(f"s_mul_i32 s{T0}, s{T0}, 112")
    A(f"v_add3_u32 {vP}, {t2}, {t3}, s{T0}")
    A(f"s_add_u32 s{T0}, s{T0}, 896")
    A(f"s_add_u32 s{T1}, s{R_}, 1")
    A(f"s_mul_i32 s{T1}, s{T1}, 896")
    A(f"s_mul_i32 s{T2}, s{J_}, 224")
    A(f"s_add_u32 s{T1}, s{T1}, s{T2}")
    A(f"s_cmp_lt_u32 s{R_}, 2")
    A(f"s_cselect_b32 s{T0}, s{T1}, s{T0}")
    A(f"s_cselect_b32 s{T1}, 4, 3")
    A(f"s_cselect_b32 s{T2}, 15, 7")
    A(f"s_cselect_b32 s55, 13, 6")
    A(f"v_lshrrev_b32 {t0}, 4, {lane}")
    A(f"v_lshlrev_b32 {t1}, 2, {t0}")
    A(f"v_sub_u32 {t1}, {lane}, {t1}")
    A(f"v_and_b32 {t1}, 15, {t1}")
    A(f"v_lshrrev_b32 {t2}, s{T1}, {t1}")
    A(f"v_mul_u32_u24 {t2}, 896, {t2}")
    A(f"v_and_b32 {t1}, s{T2}, {t1}")
    A(f"v_min_u32 {t1}, s55, {t1}")
    A(f"v_lshl_add_u32 {t1}, {t1}, 4, {t2}")
    A(f"v_mul_u32_u24 {t3}, {WROW}, {t0}")
    A(f"v_add3_u32 {vM}, {t1}, {t3}, s{T0}")
    A(f"v_and_b32 {t2}, 15, {lane}")
    A(f"s_lshl_b32 s{T0}, s{W_}, 4")
    A(f"v_add_u32 {t2}, s{T0}, {t2}")
    A(f"v_lshlrev_b32 {vGa}, 1, {t2}")
    A("s_waitcnt lgkmcnt(0)")
    srd(A, sX, "s4", "s5", X_BYTES)
    A(f"s_cmp_lt_u32 s{R_}, 2")
    A(f"s_cselect_b32 s{sM}, s6, s8"); A(f"s_cselect_b32 s{sM+1}, s7, s9")
    A(f"s_cselect_b32 s{sP}, s8, s6"); A(f"s_cselect_b32 s{sP+1}, s9, s7")
    for b in (sM, sP):
        A(f"s_mov_b32 s{b+2}, {hx(W_BYTES)}"); A(f"s_mov_b32 s{b+3}, 0x20000")
    srd(A, sG, "s10", "s11", 896)
    srd(A, sW, "s12", "s13", WS_USED)
    vm = VmQ()
    def dma_groups(i):
        sl = (i & 3) * SLOT
        g = []
        first = [f"s_lshl_b32 s{T0}, s{KC}, 7", f"s_add_u32 s{T0}, s{T0}, s{XB}", f"s_add_u32 m0, s{LX}, {sl}"]
        for blk in range(4):
            pre = first if blk == 0 else [f"s_add_u32 s{T0}, s{T0}, 6144"]
            if blk == 0: pre = pre + ["s_nop 0"]
            g.append(pre + [f"buffer_load_dwordx4 {vXA if blk < 2 else vXB}, s[{sX}:{sX+3}], s{T0} offen offset:{blk*1024} lds"])
        for q in range(4):
            pre = [f"s_mul_i32 s{T1}, s{KC}, {64*WROW}", f"s_add_u32 m0, s{LM}, {sl}", f"s_add_u32 s{T1}, s{T1}, s{WB_}", f"s_mov_b32 s{T2}, s{T1}"] if q == 0 else [f"s_add_u32 s{T1}, s{T1}, {4*WROW-1024}"]
            g.append(pre + [f"buffer_load_dwordx4 {vM}, s[{sM}:{sM+3}], s{T1} offen offset:{q*1024} lds"])
        for q in range(2):
            pre = [f"s_add_u32 m0, s{LP}, {sl}", f"s_add_u32 s{KC}, s{KC}, 1"] if q == 0 else [f"s_add_u32 s{T2}, s{T2}, {8*WROW-1024}"]
            post = [] if q == 0 else [f"s_cmp_eq_u32 s{KC}, 7", f"s_cselect_b32 s{KC}, 0, s{KC}"]
            g.append(pre + [f"buffer_load_dwordx4 {vP}, s[{sP}:{sP+3}], s{T2} offen offset:{q*1024} lds"] + post)
        return g
    for x in dma_groups(0):
        for y in x: A(y)
        vm.issue("c0")
    A(f"s_mov_b32 s{T0}, s{KC0}")
    for i in range(7):
        A(f"s_lshl_b32 s{T1}, s{T0}, 7")
        A(f"buffer_load_ushort {vG[i]}, {vGa}, s[{sG}:{sG+3}], s{T1} offen"); vm.issue(f"g{i}")
        if i < 6:
            A(f"s_add_u32 s{T0}, s{T0}, 1"); A(f"s_cmp_eq_u32 s{T0}, 7"); A(f"s_cselect_b32 s{T0}, 0, s{T0}")
    A(f"v_lshlrev_b32 {vL16}, 4, {lane}")
    A(f"v_lshlrev_b32 {t3}, 5, {t2}")
    A(f"v_and_b32 {t3}, 64, {t3}")
    A(f"v_sub_u32 {t3}, 112, {t3}")
    A(f"v_lshl_add_u32 {t3}, {t2}, 7, {t3}")
    A(f"v_add_u32 {vGa}, 32768, {t3}")
    A(f"v_and_b32 {t0}, 7, {lane}")
    A(f"v_bfe_u32 {t1}, {lane}, 3, 2")
    A(f"v_lshrrev_b32 {t2}, 5, {lane}")
    A(f"v_xor_b32 {t2}, {t2}, {t0}")
    A(f"v_lshrrev_b32 {t3}, 1, {t1}")
    A(f"v_xor_b32 {t2}, {t2}, {t3}")
    A(f"v_lshlrev_b32 {t2}, 4, {t2}")
    A(f"v_lshl_add_u32 {t2}, {t0}, 7, {t2}")
    A(f"v_lshl_add_u32 {t2}, {t1}, 10, {t2}")
    A(f"s_lshl_b32 s{T0}, s{B_}, 13")
    A(f"v_add_u32 {vXr[0]}, s{T0}, {t2}")
    for j in range(1, 4):
        A(f"v_xor_b32 {vXr[j]}, {32*j}, {vXr[0]}")
    A(f"v_bfe_u32 {t0}, {lane}, 2, 2")
    A(f"v_and_b32 {t1}, 3, {lane}")
    A(f"v_lshlrev_b32 {t1}, 3, {t1}")
    A(f"v_and_b32 {t2}, 16, {lane}")
    A(f"v_lshl_add_u32 {t1}, {t2}, 1, {t1}")
    A(f"v_lshrrev_b32 {t2}, 5, {lane}")
    A(f"v_lshl_add_u32 {t2}, {t2}, 3, {t0}")
    A(f"s_mul_i32 s{T0}, s{A_}, 56")
    A(f"s_lshl_b32 s{T1}, s{T0}, 1")
    A(f"s_cmp_lt_u32 s{R_}, 2")
    A(f"s_cselect_b32 s{T1}, s{T1}, s{T0}")
    A(f"s_cselect_b32 s{T2}, 56, 0x80")
    A(f"s_add_u32 s{T2}, s{T2}, s{T1}")
    A(f"v_lshl_add_u32 {t3}, {t0}, 6, {t1}")
    for t, sreg in ((0, T1), (1, T2)):
        A(f"v_add_u32 {vT[t]}, s{sreg}, {t3}")
        A(f"v_and_b32 {vT[t]}, 0xff, {vT[t]}")
        A(f"v_lshl_add_u32 {vT[t]}, {t2}, 8, {vT[t]}")
        A(f"v_add_u32 {vT[t]}, 16384, {vT[t]}")
    A(f"v_lshlrev_b32 {t3}, 5, {t0}")
    A(f"v_and_b32 {t3}, 64, {t3}")
    A(f"v_add3_u32 {t3}, {t3}, {t1}, s{T0}")
    A(f"v_and_b32 {t3}, 0x7f, {t3}")
    A(f"v_lshl_add_u32 {t3}, {t2}, 7, {t3}")
    A(f"v_add_u32 {vT[2]}, 32768, {t3}")
    for x in dma_groups(1):
        for y in x: A(y)
        vm.issue("c1")
    A("s_cmp_lg_u32 s2, 0")
    A(f"s_cbranch_scc1 L_{name}_nofl")
    for i in range(4): A(f"v_mov_b32 {ob[0][0][i]}, 0")
    A(f"s_lshl_b32 s{T0}, s{W_}, 10")
    A(f"s_add_u32 s{T0}, s{T0}, {hx(WS_FL)}")
    A(f"buffer_store_dwordx4 {ob[0][0][0:4]}, {vL16}, s[{sW}:{sW+3}], s{T0} offen")
    A("s_waitcnt vmcnt(0)")
    A.label(f"L_{name}_nofl")
    A(f"s_cmp_lg_u32 s{R_}, 0")
    A(f"s_cbranch_scc1 L_{name}_N")

    def reads(ks, buf):
        r = []
        for rl in range(2):
            r.append([f"ds_read_b128 {Xf[buf][4*rl:4*rl+4]}, {vXr[ks]} offset:{rl*4096}"])
        for t in range(3):
            for half in range(2):
                off = ks*4096 + half*1024 if t < 2 else ks*2048 + half*512
                r.append([f"ds_read_b64_tr_b16 {Wf[buf][4*t+2*half:4*t+2*half+2]}, {vT[t]} offset:{off}"])
        return r
    def mainloop(variant, prefill):
        q = VmQ(); q.q = list(vm.q)
        n = q.wait_for(["c0", "g0"])
        A(f"s_waitcnt vmcnt({n})")
        A(f"ds_write_b16 {vGa}, {vG[0]}")
        A(f"v_add_u32 {vGa}, {SLOT}, {vGa}")
        A("s_waitcnt lgkmcnt(0)")
        A("s_barrier")
        for g in reads(0, 0): A(g[0])
        step = 0
        pf = list(prefill)
        for i in range(7):
            dm = dma_groups(i + 2) if i + 2 < 7 else []
            for ks in range(4):
                buf = step & 1
                m = []
                for t in range(3):
                    for rl in range(2):
                        x, w = Xf[buf][4*rl:4*rl+4], Wf[buf][4*t:4*t+4]
                        c = "0" if step == 0 else str(acc[rl][t])
                        m.append(f"{MFMA} {acc[rl][t]}, {w}, {x}, {c}" if variant[t] == "T" else f"{MFMA} {acc[rl][t]}, {x}, {w}, {c}")
                A("s_waitcnt lgkmcnt(0)")
                if ks < 3:
                    rd = reads(ks + 1, buf ^ 1)
                    d = dm[4*ks:4*ks+4]
                    for x in d: q.issue(f"c{i+2}")
                    fill = [sum(rd[0:2], []), sum(rd[2:4], []) + (d[0] if len(d) > 0 else []), sum(rd[4:6], []) + (d[1] if len(d) > 1 else []),
                            sum(rd[6:8], []) + (d[2] if len(d) > 2 else []), (d[3] if len(d) > 3 else []), []]
                    for k in range(6):
                        if pf: fill[k] = fill[k] + [pf.pop()]
                    interleave(A, m, fill, per=1)
                elif i < 6:
                    n = q.wait_for([f"c{i+1}", f"g{i+1}"])
                    delta = SLOT if (i + 1) & 3 else -3 * SLOT
                    delta2 = SLOT if (i + 2) & 3 else -3 * SLOT
                    upd = [f"v_add_u32 {x}, {hx(delta)}, {x}" for x in [vXr[k] for k in range(4)] + [vT[k] for k in range(3)]]
                    rd = reads(0, buf ^ 1)
                    fill = [[f"s_waitcnt vmcnt({n})", f"ds_write_b16 {vGa}, {vG[i+1]}"] + upd[:4],
                            upd[4:] + [f"v_add_u32 {vGa}, {hx(delta2)}, {vGa}", "s_waitcnt lgkmcnt(0)", "s_barrier"] + sum(rd[0:2], []),
                            sum(rd[2:5], []), sum(rd[5:8], []), [], []]
                    interleave(A, m, fill, per=1)
                else:
                    for x in m: A(x)
                step += 1
        assert not pf
    def cvt_tile(rl, t, lo, hi):
        for i in range(lo, hi):
            A(f"v_cvt_pk_bf16_f32 {ob[rl][t][i]}, {acc[rl][t][2*i]}, {acc[rl][t][2*i+1]}")
    def phi_tile(rl, t):
        x = acc[rl][t]
        tmp = Xf[0]
        for g in range(0, 16, 8):
            for i in range(8): A(f"v_mul_f32 {tmp[i]}, s{T2}, {x[g+i]}")
            for i in range(8): A(f"v_exp_f32_e64 {tmp[i]}, {tmp[i]} clamp")
            for i in range(8): A(f"v_max_f32 {x[g+i]}, s55, {x[g+i]}")
            for i in range(8): A(f"v_add_f32 {x[g+i]}, {x[g+i]}, {tmp[i]}")
    def store_tile(rl, t, sreg, extra):
        A(f"buffer_store_dwordx4 {ob[rl][t][0:4]}, {vL16}, s[{sW}:{sW+3}], s{sreg} offen offset:{extra}")
        A(f"buffer_store_dwordx4 {ob[rl][t][4:8]}, {vL16}, s[{sW}:{sW+3}], s{sreg} offen offset:{extra+1024}")
    def kv_addr():
        A(f"s_lshl_b32 s{T0}, s{J_}, 1"); A(f"s_add_u32 s{T0}, s{T0}, s{A_}"); A(f"s_lshl_b32 s{T0}, s{T0}, 7")
        A(f"s_lshl_b32 s{T1}, s{QB}, 1"); A(f"s_add_u32 s{T1}, s{T1}, s{B_}"); A(f"s_lshl_b32 s{T1}, s{T1}, 1")
        A(f"s_add_u32 s{T0}, s{T0}, s{T1}"); A(f"s_lshl_b32 s{T0}, s{T0}, 12")
    def pair_head(dst):
        A(f"s_lshl_b32 s{dst}, s{J_}, 1"); A(f"s_and_b32 s{T1}, s{R_}, 1"); A(f"s_add_u32 s{dst}, s{dst}, s{T1}")
        A(f"s_lshl_b32 s{dst}, s{dst}, 1"); A(f"s_add_u32 s{dst}, s{dst}, s{A_}")
    def q_addr(base):
        pair_head(T0)
        A(f"s_lshl_b32 s{T0}, s{T0}, 6")
        A(f"s_lshl_b32 s{T1}, s{QB}, 1"); A(f"s_add_u32 s{T1}, s{T1}, s{B_}"); A(f"s_lshl_b32 s{T1}, s{T1}, 1")
        A(f"s_add_u32 s{T0}, s{T0}, s{T1}"); A(f"s_lshl_b32 s{T0}, s{T0}, 11"); A(f"s_add_u32 s{T0}, s{T0}, {hx(base)}")
    def q_finish():
        for rl in range(2): cvt_tile(rl, 2, 0, 6)
        A("s_mov_b64 exec, 0xffffffff")
        for rl in range(2): cvt_tile(rl, 2, 6, 8)
        A("s_mov_b64 exec, -1")
        for rl in range(2): store_tile(rl, 2, T0, rl * 2048)

    pre = []
    for rl in range(2):
        for t in range(2):
            pre += [f"v_mov_b32 {ob[rl][t][6]}, {hx(ONES)}", f"v_mov_b32 {ob[rl][t][7]}, 0x3f80"]
        pre += [f"v_mov_b32 {ob[rl][2][6]}, 0", f"v_mov_b32 {ob[rl][2][7]}, 0"]
    mainloop("TTT", pre)
    kv_addr()
    A("s_nop 1")
    for t in range(2):
        for rl in range(2): cvt_tile(rl, t, 0, 6)
    A("s_mov_b64 exec, 0xffffffff")
    for t in range(2):
        for rl in range(2): cvt_tile(rl, t, 6, 8)
    A("s_mov_b64 exec, -1")
    for t in range(2):
        for rl in range(2):
            store_tile(rl, t, T0, 0)
            A(f"s_add_u32 s{T0}, s{T0}, {4096 if rl == 0 else 64*4096-4096}")
    A(f"s_cmp_lg_u32 s{J_}, 0"); A(f"s_cbranch_scc1 L_{name}_qB")
    A(f"s_cmp_lg_u32 s{A_}, 1"); A(f"s_cbranch_scc1 L_{name}_qB")
    A(f"s_mov_b32 s{T2}, {hx(f32bits(-LOG2E))}")
    A(f"v_and_b32 {t2}, 31, {lane}")
    A(f"v_lshlrev_b32 {t2}, 2, {t2}")
    A(f"s_lshl_b32 s{T0}, s{QB}, 1"); A(f"s_add_u32 s{T0}, s{T0}, s{B_}"); A(f"s_lshl_b32 s{T0}, s{T0}, 8"); A(f"s_add_u32 s{T0}, s{T0}, {hx(WS_G)}")
    for rl, tt in ((0, t0), (1, t1)): A(f"v_mul_f32 {tt}, s{T2}, {acc[rl][2][12]}")
    for tt in (t0, t1): A(f"v_exp_f32 {tt}, {tt}")
    A("s_nop 0")
    for tt in (t0, t1): A(f"v_add_f32 {tt}, 1.0, {tt}")
    for tt in (t0, t1): A(f"v_rcp_f32 {tt}, {tt}")
    A("s_mov_b32 exec_lo, 0")
    A(f"buffer_store_dword {t0}, {t2}, s[{sW}:{sW+3}], s{T0} offen")
    A(f"buffer_store_dword {t1}, {t2}, s[{sW}:{sW+3}], s{T0} offen offset:128")
    A("s_mov_b32 exec_lo, -1")
    A.label(f"L_{name}_qB")
    A(f"s_mov_b32 s{T2}, {hx(f32bits(LOG2E))}")
    A(f"s_mov_b32 s55, {hx(f32bits(1e-6))}")
    for rl in range(2): phi_tile(rl, 2)
    q_addr(WS_PQ)
    q_finish()
    A("s_endpgm")

    A.label(f"L_{name}_N")
    A(f"s_cmp_eq_u32 s{R_}, 1")
    A(f"s_cselect_b32 s{C0}, {hx(ONES)}, 0")
    pre = []
    for rl in range(2):
        pre += [f"v_mov_b32 {ob[rl][0][i]}, s{C0}" for i in range(8)]
        pre += [f"v_mov_b32 {ob[rl][1][i]}, {hx(ONES)}" for i in range(8)]
        pre += [f"v_mov_b32 {ob[rl][2][6]}, 0", f"v_mov_b32 {ob[rl][2][7]}, 0"]
    mainloop("NNT", pre)
    A(f"s_cmp_lg_u32 s{R_}, 1")
    A(f"s_cbranch_scc1 L_{name}_B")
    kv_addr()
    A("s_mov_b32 exec_lo, 0xefffffff"); A("s_mov_b32 exec_hi, 0xefffffff")
    for t in range(2):
        for rl in range(2): cvt_tile(rl, t, 0, 8)
    A("s_mov_b64 exec, -1")
    for t in range(2):
        for rl in range(2):
            store_tile(rl, t, T0, 2048)
            A(f"s_add_u32 s{T0}, s{T0}, {4096 if rl == 0 else 64*4096-4096}")
    A(f"s_branch L_{name}_qB")
    A.label(f"L_{name}_B")
    A(f"s_mov_b32 s{T2}, {hx(f32bits(LOG2E))}")
    A(f"s_mov_b32 s55, {hx(f32bits(1e-6))}")
    A("s_nop 7")
    for rl in range(2): phi_tile(rl, 0)
    A("s_mov_b32 exec_lo, 0x0fffffff"); A("s_mov_b32 exec_hi, 0x0fffffff")
    for rl in range(2): cvt_tile(rl, 0, 0, 8)
    A("s_mov_b32 exec_lo, 0xefffffff"); A("s_mov_b32 exec_hi, 0xefffffff")
    for rl in range(2): cvt_tile(rl, 1, 0, 8)
    A("s_mov_b64 exec, -1")
    kvp = acc[0][0]
    A(f"s_mov_b32 s{T2}, {hx(f32bits(QSCALE))}")
    A("s_nop 0")
    m = []
    for rl in range(2):
        for st in range(2):
            m.append(f"{MFMA} {kvp}, {ob[rl][0][4*st:4*st+4]}, {ob[rl][1][4*st:4*st+4]}, {'0' if rl == 0 and st == 0 else kvp}")
    sc = [[f"v_mul_f32 {acc[rl][2][i]}, s{T2}, {acc[rl][2][i]}"] for rl in range(2) for i in range(16)]
    interleave(A, m, sc)
    q_addr(WS_QA)
    q_finish()
    A("s_barrier")
    A(f"s_lshl_b32 s{T0}, s{W_}, 11")
    A(f"v_add_u32 {t0}, s{T0}, {vL16}")
    A(f"v_xor_b32 {t1}, 0x1000, {t0}")
    pair_head(T0)
    A(f"s_lshl_b32 s{T0}, s{T0}, 1"); A(f"s_add_u32 s{T0}, s{T0}, s{B_}"); A(f"s_lshl_b32 s{T0}, s{T0}, 5"); A(f"s_add_u32 s{T0}, s{T0}, s{QB}")
    A(f"s_lshl_b32 s{T0}, s{T0}, 10"); A(f"s_add_u32 s{T0}, s{T0}, {hx(WS_KVP)}"); A(f"s_add_u32 s{T1}, s{T0}, 16384")
    A(f"s_cmp_eq_u32 s{B_}, 1")
    A(f"s_cbranch_scc1 L_{name}_b1")
    for b in range(2):
        if b == 1: A.label(f"L_{name}_b1")
        snd, keep = kvp[8*(1-b):8*(1-b)+8], kvp[8*b:8*b+8]
        A(f"ds_write_b128 {t0}, {snd[0:4]}")
        A(f"ds_write_b128 {t0}, {snd[4:8]} offset:1024")
        A("s_waitcnt lgkmcnt(0)")
        A("s_barrier")
        A(f"ds_read_b128 {Xf[0][0:4]}, {t1}")
        A(f"ds_read_b128 {Xf[0][4:8]}, {t1} offset:1024")
        A("s_waitcnt lgkmcnt(0)")
        for i in range(8): A(f"v_add_f32 {keep[i]}, {keep[i]}, {Xf[0][i]}")
        A(f"buffer_store_dwordx4 {keep[0:4]}, {vL16}, s[{sW}:{sW+3}], s{T0} offen")
        A(f"buffer_store_dwordx4 {keep[4:8]}, {vL16}, s[{sW}:{sW+3}], s{T1} offen")
        if b == 0: A("s_endpgm")
    A.label(f"L_{name}_end")
    A("s_endpgm")
    return A.text(), kernel_desc(name, V.high, 0, 64), V.high

if __name__ == "__main__":
    t, d, n = gen_k1()
    print("vgprs", n, "hazards", check_hazards(t), "lines", t.count("\n"))
```

```python
from common import *
from collections import deque

L_RED, L_WO, L_KVX, L_VOTE = 0, 49152, 114688, 116736
K2_LDS = 118784
SENT = 0xFFFFFFFF

class TailRegs: pass

def tail_map(A, T0, IDX, QB2, CT):
    A(f"s_lshr_b32 s{IDX}, s2, 3")
    A(f"s_and_b32 s{T0}, s2, 7")
    A(f"s_lshl_b32 s{QB2}, s{T0}, 1")
    A(f"s_cmp_ge_u32 s{IDX}, 14")
    A(f"s_cselect_b32 s{T0}, 14, 0")
    A(f"s_addc_u32 s{QB2}, s{QB2}, 0")
    A(f"s_sub_u32 s{CT}, s{IDX}, s{T0}")

def wo_dma_items(vWo, sA, sB, W_, T, lbase):
    it = []
    for br, srd_ in ((1, sB), (0, sA)):
        for q in range(8):
            pre = []
            if q % 4 == 0:
                pre = [[f"s_lshl_b32 s{T}, s{W_}, 13"], [f"s_add_u32 m0, s{T}, {lbase + br*32768 + q*1024}"],
                       [f"s_mul_i32 s{T}, s{W_}, {128*XROW}"]]
                if q: pre.append([f"s_add_u32 s{T}, s{T}, {q*16*XROW}"])
            else:
                pre = [[f"s_add_u32 s{T}, s{T}, {16*XROW-1024}"]]
            it += pre + [[f"buffer_load_dwordx4 {vWo}, s[{srd_}:{srd_+3}], s{T} offen offset:{(q%4)*1024} lds", "VM:wo"]]
    return it

def wo_addr(A, vWo, vWr, lane, t0, t1, CT, T0, lbase):
    A(f"v_lshrrev_b32 {t0}, 2, {lane}")
    A(f"v_mul_u32_u24 {t0}, {XROW}, {t0}")
    A(f"v_and_b32 {t1}, 3, {lane}")
    A(f"v_lshl_add_u32 {t0}, {t1}, 4, {t0}")
    A(f"s_lshl_b32 s{T0}, s{CT}, 6")
    A(f"v_add_u32 {vWo}, s{T0}, {t0}")
    A(f"v_lshlrev_b32 {t1}, 3, {t1}")
    A(f"v_and_b32 {t0}, 16, {lane}")
    A(f"v_lshl_add_u32 {t1}, {t0}, 1, {t1}")
    A(f"v_bfe_u32 {t0}, {lane}, 2, 2")
    A(f"v_lshl_add_u32 {t1}, {t0}, 6, {t1}")
    A(f"v_lshrrev_b32 {t0}, 5, {lane}")
    A(f"v_lshl_add_u32 {t1}, {t0}, 8, {t1}")
    A(f"v_add_u32 {vWr}, {lbase}, {t1}")

def wo_reads(dst, vWr, br, k):
    h, st = k >> 1, k & 1
    o = br*32768 + (28*h + 16*st)*64
    return [f"ds_read_b64_tr_b16 {dst[0:2]}, {vWr} offset:{o}", f"ds_read_b64_tr_b16 {dst[2:4]}, {vWr} offset:{o+512}"]

def gemm_jit(A, acc, cinit, ofr, wtmp, vWr, br, pre=None):
    nb = len(wtmp)
    for k in range(nb - 1):
        for x in wo_reads(wtmp[k], vWr, br, k): A(x)
    for k in range(32):
        kk = k + nb - 1
        if kk < 32:
            for x in wo_reads(wtmp[kk % nb], vWr, br, kk): A(x)
        left = min(31 - k, nb - 1)
        A(f"s_waitcnt lgkmcnt({2*left})")
        if pre: pre(k)
        A(f"{MFMA} {acc}, {wtmp[k % nb]}, {ofr[4*k:4*k+4]}, {cinit if k == 0 else acc}")

def out_store(A, acc, pk, lane, t0, t1, sO, QB2, CT, W_, T0, T1):
    A(f"v_and_b32 {t0}, 31, {lane}")
    A(f"v_mul_u32_u24 {t0}, {XROW}, {t0}")
    A(f"v_lshrrev_b32 {t1}, 5, {lane}")
    A(f"v_lshl_add_u32 {t0}, {t1}, 4, {t0}")
    A(f"s_lshl_b32 s{T0}, s{QB2}, 2"); A(f"s_add_u32 s{T0}, s{T0}, s{W_}"); A(f"s_mul_i32 s{T0}, s{T0}, {32*XROW}")
    A(f"s_lshl_b32 s{T1}, s{CT}, 6"); A(f"s_add_u32 s{T0}, s{T0}, s{T1}")
    A("s_nop 2")
    for i in range(8): A(f"v_cvt_pk_bf16_f32 {pk[i]}, {acc[2*i]}, {acc[2*i+1]}")
    A("s_nop 0")
    for p in (0, 4):
        A(f"v_permlane32_swap_b32 {pk[p]}, {pk[p+2]}")
        A(f"v_permlane32_swap_b32 {pk[p+1]}, {pk[p+3]}")
    A(f"buffer_store_dwordx4 {pk[0:4]}, {t0}, s[{sO}:{sO+3}], s{T0} offen")
    A(f"buffer_store_dwordx4 {pk[4:8]}, {t0}, s[{sO}:{sO+3}], s{T0} offen offset:32")

def gen_k2(name="attn_kernel", fused=True, bblock_at=20, poll_at=48, force_fallback=False, NB=5, QM=3, stamps=False):
    A = Asm()
    V = Alloc("v", 1, 256); AG = Alloc("a", 0, 256)
    sW, sO, sA, sB = 16, 20, 24, 28
    W_, H, QB, KO, T0, T1, T2, IDX, QB2, CT, OK, OSL, TW, CNT = 36, 37, 38, 39, 40, 41, 42, 43, 44, 45, 46, 47, 48, 49
    SC = "sc1" if fused else ""
    lane = V(); t0 = V(); t1 = V(); t2 = V(); t3 = V(); vL16 = V(); vKV = V(); vg = V(); vWo = V(); vWr = V(); vRw = V(); vRr = V(); vfl = V()
    tp = V(2, 2)
    big = V(136, 4)
    Q = [big[8*j:8*j+8] for j in range(4)]
    Sb = [big[32:48], big[48:64]]
    P = big[64:72]
    O = [big[72+16*j:88+16*j] for j in range(4)]
    stg = V(64, 4)
    pq = V(8, 4); obuf = V(8, 4)
    KVr = [AG(16, 4) for _ in range(NB)]
    oBf = AG(128, 4)
    A(kernel_head(name))
    ST = Stamps(A, stamps, 1)
    A("s_cmp_ge_u32 s2, 256")
    A(f"s_cbranch_scc1 L_{name}_end")
    ST("rt0", True); ST("start")
    A("s_load_dwordx2 s[4:5], s[0:1], 72")
    if fused:
        A("s_load_dwordx2 s[6:7], s[0:1], 56")
        A("s_load_dwordx2 s[8:9], s[0:1], 16")
        A("s_load_dwordx2 s[10:11], s[0:1], 40")
    A(f"v_lshrrev_b32 {t0}, 6, v0")
    A(f"v_and_b32 {lane}, 63, v0")
    A(f"v_readfirstlane_b32 s{W_}, {t0}")
    A(f"s_and_b32 s{H}, s2, 7"); A(f"s_lshl_b32 s{H}, s{H}, 1"); A(f"s_bfe_u32 s{T0}, s2, 0x10003"); A(f"s_add_u32 s{H}, s{H}, s{T0}")
    A(f"s_lshr_b32 s{QB}, s2, 4")
    A(f"v_lshlrev_b32 {vL16}, 4, {lane}")
    A(f"s_lshl_b32 s{T0}, s{H}, 2"); A(f"s_add_u32 s{T0}, s{T0}, s{W_}"); A(f"s_lshl_b32 s{T0}, s{T0}, 16")
    A(f"v_add_u32 {vKV}, s{T0}, {vL16}")
    A(f"s_lshl_b32 s{KO}, s{QB}, 12")
    A(f"s_lshl_b32 s{T1}, s{H}, 4"); A(f"s_add_u32 s{T1}, s{T1}, s{QB}"); A(f"s_lshl_b32 s{T1}, s{T1}, 13"); A(f"s_add_u32 s{T1}, s{T1}, {hx(WS_QA)}")
    for j in range(4):
        A(f"s_add_u32 s{T0}, s{W_}, {j+1}"); A(f"s_and_b32 s{T0}, s{T0}, 3"); A(f"s_lshl_b32 s{T0}, s{T0}, 11"); A(f"s_add_u32 s{52+j}, s{T0}, s{T1}")
    A("s_waitcnt lgkmcnt(0)")
    srd(A, sW, "s4", "s5", WS_USED)
    vm = VmQ()
    def emit(item):
        for x in item:
            if x.startswith("VM:"): vm.issue(x[3:]); issued[x[3:]] = issued.get(x[3:], 0) + 1
            else: A(x)
    issued = {}
    def ldq(j):
        return [[f"buffer_load_dwordx4 {Q[j][4*st:4*st+4]}, {vL16}, s[{sW}:{sW+3}], s{52+j} offen offset:{st*1024}", f"VM:Q{j}"] for st in range(2)]
    def ldk(n): return [[f"buffer_load_dwordx4 {KVr[n%NB][4*st:4*st+4]}, {vKV}, s[{sW}:{sW+3}], s{KO} offen offset:{st*1024}", f"VM:K{n}"] for st in range(2)]
    def ldv(n): return [[f"buffer_load_dwordx4 {KVr[n%NB][8+4*st:12+4*st]}, {vKV}, s[{sW}:{sW+3}], s{KO} offen offset:{2048+st*1024}", f"VM:V{n}"] for st in range(2)]
    adv = [[f"s_add_u32 s{KO}, s{KO}, 4096"], [f"s_and_b32 s{KO}, s{KO}, 0xffff"]]
    pro = ldq(0) + ldk(0) + ldq(1) + ldv(0) + adv + ldq(2) + ldq(3)
    for n in range(1, NB - 1): pro += ldk(n) + ldv(n) + adv
    for it in pro: emit(it)
    if fused:
        srd(A, sO, "s6", "s7", OUT_BYTES); srd(A, sA, "s8", "s9", WO_BYTES); srd(A, sB, "s10", "s11", WO_BYTES)
        tail_map(A, T0, IDX, QB2, CT)
        wo_addr(A, vWo, vWr, lane, t0, t1, CT, T0, L_WO)
    A(f"s_lshl_b32 s{T0}, s{QB}, 2"); A(f"s_add_u32 s{T0}, s{T0}, s{W_}")
    A(f"s_lshl_b32 s{OSL}, s{T0}, 4"); A(f"s_add_u32 s{OSL}, s{OSL}, s{H}"); A(f"s_lshl_b32 s{OSL}, s{OSL}, 11")
    A(f"s_mul_i32 s{T1}, s{W_}, 12288")
    A(f"v_add_u32 {vRr}, s{T1}, {vL16}")
    for i in (6, 7): A(f"v_mov_b32 {obuf[i]}, 0")
    A(f"v_and_b32 {vfl}, 31, {lane}"); A(f"v_lshlrev_b32 {vfl}, 2, {vfl}")

    order = [(n, j) for n in range(16 - QM) for j in range(4)] + [(n, j) for j in range(4) for n in range(16 - QM, 16)]
    firstO = set()
    def qk(t, st):
        n, j = order[t]
        return (f"{MFMA} {Sb[t&1]}, {KVr[n%NB][4*st:4*st+4]}, {Q[j][4*st:4*st+4]}, {'0' if st == 0 else Sb[t&1]}", [f"K{n}", f"Q{j}"])
    def pv(t, st):
        n, j = order[t]
        c = O[j] if j in firstO else "0"
        firstO.add(j)
        return (f"{MFMA} {O[j]}, {KVr[n%NB][8+4*st:12+4*st]}, {P[4*st:4*st+4]}, {c}", [f"V{n}"])
    ex = lambda t, i: f"v_exp_f32 {Sb[t&1][i]}, {Sb[t&1][i]}"
    cv = lambda t, i: f"v_cvt_pk_bf16_f32 {P[i]}, {Sb[t&1][2*i]}, {Sb[t&1][2*i+1]}"
    slots = []
    for t in range(64):
        slots.append((qk(t+1, 0) if t < 63 else None, [ex(t, i) for i in range(0, 4)]))
        slots.append((qk(t+1, 1) if t < 63 else None, [cv(t, 0), cv(t, 1)] + [ex(t, i) for i in range(4, 8)]))
        slots.append((pv(t-1, 1) if t > 0 else None, [cv(t, 2), cv(t, 3)] + [ex(t, i) for i in range(8, 12)]))
        slots.append((pv(t, 0), [cv(t, 4), cv(t, 5)] + [ex(t, i) for i in range(12, 16)] + [cv(t, 6), cv(t, 7)]))
    hi, lo = [], []
    lastK = {n: max(4*(t-1)+1 for t in range(64) if order[t][0] == n) for n in range(16)}
    lastV = {n: max(4*(t+1)+2 for t in range(64) if order[t][0] == n) for n in range(16)}
    for n in range(NB - 1, 16):
        p = n - NB
        eK = max(lastK[p] if p >= 0 else 0, (n - NB + 1) * 16); eV = max(lastV[p] if p >= 0 else 0, eK)
        hi.append((eK, ldk(n))); hi.append((eV, ldv(n) + adv))
    bl = [[f"s_lshl_b32 s{T1}, s{H}, 2"], [f"s_add_u32 s{T1}, s{T1}, s{W_}"], [f"s_lshl_b32 s{T1}, s{T1}, 14"], [f"s_add_u32 s{T1}, s{T1}, {hx(WS_KVP)}"]]
    for b in range(16):
        if b % 4 == 0 and b: bl.append([f"s_add_u32 s{T1}, s{T1}, 4096"])
        bl.append([f"buffer_load_dwordx4 {stg[4*b:4*b+4]}, {vL16}, s[{sW}:{sW+3}], s{T1} offen offset:{(b%4)*1024}", "VM:kvp"])
    bl.append([f"s_add_u32 s{T1}, s55, {WS_PQ - WS_QA}"])
    for st in range(2): bl.append([f"buffer_load_dwordx4 {pq[4*st:4*st+4]}, {vL16}, s[{sW}:{sW+3}], s{T1} offen offset:{st*1024}", "VM:kvp"])
    bl += [[f"s_lshr_b32 s{T1}, s{OSL}, 15"], [f"s_lshl_b32 s{T1}, s{T1}, 7"], [f"s_add_u32 s{T1}, s{T1}, {hx(WS_G)}"],
           [f"buffer_load_dword {vg}, {vfl}, s[{sW}:{sW+3}], s{T1} offen", "VM:kvp"]]
    lo.append((2, bl))
    if fused:
        lo.append(((bblock_at + 1) * 4, wo_dma_items(vWo, sA, sB, W_, TW, L_WO)))
        lo.append(((bblock_at + 12) * 4, ["FLAG"]))
        lo.append(((poll_at - 4) * 4, [[f"s_lshl_b32 s{TW}, s{QB2}, 2"], [f"s_add_u32 s{TW}, s{TW}, s{W_}"], [f"s_lshl_b32 s{T1}, s{TW}, 6"], [f"s_add_u32 s{T1}, s{T1}, {hx(WS_FL)}"],
                   [f"buffer_load_dword {vfl}, {t3}, s[{sW}:{sW+3}], s{T1} offen sc1", "VM:flld"],
                   [f"s_lshl_b32 s{TW}, s{TW}, 15"], [f"s_add_u32 s{TW}, s{TW}, {hx(WS_OB)}"]]))
        ol = []
        for k in range(32):
            if k % 4 == 0 and k: ol.append([f"s_add_u32 s{TW}, s{TW}, 4096"])
            ol.append([f"buffer_load_dwordx4 {oBf[4*k:4*k+4]}, {vL16}, s[{sW}:{sW+3}], s{TW} offen offset:{(k%4)*1024} sc1", "VM:oB"])
        lo.append((poll_at * 4 + 1, ol))
    for j in range(3):
        tl = max(t for t in range(64) if order[t][1] == j)
        hi.append((tl * 4, [[f"s_add_u32 s{T2}, s{W_}, {j+1}"], [f"s_and_b32 s{T2}, s{T2}, 3"], [f"s_mul_i32 s{T2}, s{T2}, 12288"]]))
        wr = [[f"v_add_u32 {vRw}, s{T2}, {vL16}"]] + [[f"ds_write_b128 {vRw}, {O[j][4*q:4*q+4]} offset:{j*4096 + q*1024}"] for q in range(4)]
        if j == 2:
            wr += [["s_waitcnt lgkmcnt(0)", "s_barrier"]]
            rd = [f"ds_read_b128 {stg[16*jj+4*q:16*jj+4*q+4]}, {vRr} offset:{jj*4096 + q*1024}" for jj in range(3) for q in range(4)]
            wr += [rd[i:i+3] for i in range(0, 12, 3)]
        hi.append(((tl + 1) * 4 + 4, wr))
    hi.sort(key=lambda e: e[0]); lo.sort(key=lambda e: e[0])
    ph, pl = deque(), deque()

    def norm_store(acc, gfac, base, sent=False):
        for i in range(16): A(f"v_mul_f32 {acc[i]}, {gfac}, {acc[i]}")
        A(f"s_add_u32 s{T0}, s{OSL}, {hx(base)}")
        for i in range(6): A(f"v_cvt_pk_bf16_f32 {obuf[i]}, {acc[2*i]}, {acc[2*i+1]}")
        A("s_mov_b64 exec, 0xffffffff")
        for i in (6, 7): A(f"v_cvt_pk_bf16_f32 {obuf[i]}, {acc[2*i]}, {acc[2*i+1]}")
        A("s_mov_b64 exec, -1")
        for st in range(2):
            A(f"buffer_store_dwordx4 {obuf[4*st:4*st+4]}, {vL16}, s[{sW}:{sW+3}], s{T0} offen offset:{st*1024} {SC}"); vm.issue("ost")
    def bcast_den(acc):
        A(f"v_mov_b32 {t1}, {acc[12]}")
        A("s_nop 1")
        A(f"v_permlane32_swap_b32 {acc[12]}, {t1}")

    def bblock():
        n = vm.wait_for("kvp")
        if n is not None: A(f"s_waitcnt vmcnt({n})")
        for lvl in (32, 16, 8, 4):
            for i in range(0, lvl, 2):
                A(f"v_pk_add_f32 {stg[i:i+2]}, {stg[i:i+2]}, {stg[lvl+i:lvl+i+2]}")
        A(f"s_lshr_b32 s{T0}, s{W_}, 1"); A(f"s_lshl_b32 s{T0}, s{T0}, 10"); A(f"s_and_b32 s{T1}, s{W_}, 1"); A(f"s_lshl_b32 s{T1}, s{T1}, 3")
        A(f"s_add_u32 s{T0}, s{T0}, s{T1}")
        A(f"v_add_u32 {t0}, s{T0}, {vL16}")
        A(f"v_cvt_pk_bf16_f32 {tp[0]}, {stg[0]}, {stg[1]}")
        A(f"v_cvt_pk_bf16_f32 {tp[1]}, {stg[2]}, {stg[3]}")
        A(f"v_add_u32 {t0}, {L_KVX}, {t0}")
        A(f"v_add_u32 {t2}, {L_KVX}, {vL16}")
        A(f"ds_write_b64 {t0}, {tp}")
        if fused:
            for i in range(4): A(f"v_mov_b32 {stg[40+i]}, -1")
            A(f"s_add_u32 s{T0}, s{OSL}, {hx(WS_OA)}")
            for st in range(2):
                A(f"buffer_store_dwordx4 {stg[40:44]}, {vL16}, s[{sW}:{sW+3}], s{T0} offen offset:{st*1024} sc1"); vm.issue("ost")
        A("s_waitcnt lgkmcnt(0)")
        A("s_barrier")
        A(f"ds_read_b128 {stg[4:8]}, {t2}")
        A(f"ds_read_b128 {stg[8:12]}, {t2} offset:1024")
        A(f"v_sub_f32 {t3}, 1.0, {vg}")
        A("s_waitcnt lgkmcnt(1)")
        num = stg[16:32]
        A(f"{MFMA} {num}, {stg[4:8]}, {pq[0:4]}, 0")
        A("s_waitcnt lgkmcnt(0)")
        A(f"{MFMA} {num}, {stg[8:12]}, {pq[4:8]}, {num}")
        A("s_nop 11")
        bcast_den(num)
        A(f"v_add_f32 {t1}, {hx(f32bits(1e-6))}, {t1}")
        A(f"v_rcp_f32 {t1}, {t1}")
        A("s_nop 0")
        A(f"v_mul_f32 {t1}, {t1}, {t3}")
        norm_store(num, t1, WS_OB)
        A(f"v_and_b32 {t3}, 15, {lane}"); A(f"v_lshlrev_b32 {t3}, 2, {t3}")

    m, need = qk(0, 0)
    A(f"s_waitcnt vmcnt({vm.wait_for(need)})"); A(m); A(qk(0, 1)[0])
    ST("first")
    A("s_nop 9")
    def place(it):
        if it == "FLAG":
            n = vm.wait_for("ost")
            if n is not None: A(f"s_waitcnt vmcnt({n})")
            A(f"s_lshr_b32 s{T0}, s{OSL}, 9"); A(f"s_add_u32 s{T0}, s{T0}, {hx(WS_FL)}")
            A(f"v_mov_b32 {t0}, 0"); A(f"v_mov_b32 {t1}, 1")
            A("s_mov_b64 exec, 1")
            A(f"buffer_store_dword {t1}, {t0}, s[{sW}:{sW+3}], s{T0} offen sc1"); vm.issue("fl")
            A("s_mov_b64 exec, -1")
        else: emit(it)
    for i, (mf, valu) in enumerate(slots):
        if i % 4 == 0 and i // 4 == bblock_at:
            assert issued.get("kvp") == 19 and not pl, (issued, pl)
            ST("b0"); bblock(); ST("b1")
        if fused and i % 4 == 0 and i // 4 == poll_at:
            assert issued.get("flld") == 1 and not pl
            n = vm.wait_for("flld")
            if n is not None: A(f"s_waitcnt vmcnt({n})")
            A(f"s_mov_b32 s{CNT}, 0")
            A.label(f"L_{name}_pollB")
            A(f"v_cmp_ne_u32 vcc, 1, {vfl}")
            A(f"s_cbranch_vccz L_{name}_pollB_done")
            A(f"buffer_load_dword {vfl}, {t3}, s[{sW}:{sW+3}], s{T1} offen sc1")
            A(f"s_add_u32 s{CNT}, s{CNT}, 1")
            A(f"s_cmp_lt_u32 s{CNT}, 0x40000")
            A("s_waitcnt vmcnt(0)")
            A(f"s_cbranch_scc1 L_{name}_pollB")
            A.label(f"L_{name}_pollB_done")
        while hi and hi[0][0] <= i: ph.extend(hi.pop(0)[1])
        while lo and lo[0][0] <= i: pl.extend(lo.pop(0)[1])
        if mf is not None:
            for tg in mf[1]: assert issued.get(tg) == 2, (i, tg)
            n = vm.wait_for(mf[1])
            if n is not None: A(f"s_waitcnt vmcnt({n})")
            A(mf[0])
        nxt = slots[i+1][0] if i + 1 < len(slots) else None
        if nxt is not None and any(tg in vm.q for tg in nxt[1]) and all(issued.get(tg) == 2 for tg in nxt[1]):
            A(f"s_waitcnt vmcnt({vm.wait_for(nxt[1])})")
        elif ph: place(ph.popleft())
        elif pl: place(pl.popleft())
        for x in valu: A(x)
    assert not hi and not lo
    A("s_nop 0")
    while ph: place(ph.popleft())
    A(pv(63, 1)[0])
    while pl: place(pl.popleft())
    ST("loop")

    def reduce_norm(check):
        if not check:
            for j in range(3):
                for q in range(4): A(f"ds_read_b128 {stg[16*j+4*q:16*j+4*q+4]}, {vRr} offset:{j*4096 + q*1024}")
        A("s_waitcnt lgkmcnt(4)")
        for i in range(0, 16, 2): A(f"v_pk_add_f32 {stg[i:i+2]}, {stg[i:i+2]}, {stg[16+i:18+i]}")
        A("s_waitcnt lgkmcnt(0)")
        for i in range(0, 16, 2): A(f"v_pk_add_f32 {stg[i:i+2]}, {stg[i:i+2]}, {stg[32+i:34+i]}")
        for i in range(0, 16, 2): A(f"v_pk_add_f32 {O[3][i:i+2]}, {O[3][i:i+2]}, {stg[i:i+2]}")
        if check:
            A(f"v_pk_mul_f32 {tp}, {O[3][0:2]}, 0")
            for i in range(2, 16, 2): A(f"v_pk_fma_f32 {tp}, {O[3][i:i+2]}, 0, {tp}")
        bcast_den(O[3])
        if check:
            A(f"v_add_f32 {t2}, {tp[0]}, {tp[1]}")
            A(f"v_add_f32 {t2}, {t2}, {t1}")
            lo, hi = (2.0**-60, 2.0**60) if not force_fallback else (2.0**30, 2.0**60)
            A(f"v_cmp_le_f32 vcc, {hx(f32bits(lo))}, {t2}")
            A(f"s_mov_b32 s{T1}, {hx(f32bits(hi))}")
            A(f"v_cmp_ge_f32 s[50:51], s{T1}, {t2}")
        A(f"v_rcp_f32 {t1}, {t1}")
        if check:
            A("s_and_b64 vcc, vcc, s[50:51]")
            A("s_cmp_eq_u64 vcc, -1")
            A(f"s_cselect_b32 s{OK}, 1, 0")
        else: A("s_nop 0")
        A(f"v_mul_f32 {t1}, {t1}, {vg}")
    reduce_norm(True)
    A(f"s_cbranch_scc0 L_{name}_vote")
    norm_store(O[3], t1, WS_OA)
    A.label(f"L_{name}_vote")
    ST("pub")
    A(f"s_lshl_b32 s{T0}, s{W_}, 2"); A(f"s_add_u32 s{T0}, s{T0}, {L_VOTE}")
    A(f"v_mov_b32 {t0}, s{T0}"); A(f"v_mov_b32 {t1}, s{OK}"); A(f"v_mov_b32 {t2}, {L_VOTE}")
    A(f"ds_write_b32 {t0}, {t1}")
    if fused: A("s_waitcnt vmcnt(2) lgkmcnt(0)")
    else: A("s_waitcnt lgkmcnt(0)")
    A("s_barrier")
    A(f"ds_read_b128 {pq[0:4]}, {t2}")
    A("s_waitcnt lgkmcnt(0)")
    A(f"v_and_b32 {t0}, {pq[0]}, {pq[1]}"); A(f"v_and_b32 {t1}, {pq[2]}, {pq[3]}"); A(f"v_and_b32 {t0}, {t0}, {t1}")
    A("s_nop 0")
    A(f"v_readfirstlane_b32 s{T0}, {t0}")
    A(f"s_cmp_eq_u32 s{T0}, 0")
    A(f"s_cbranch_scc1 L_{name}_fb")
    A.label(f"L_{name}_tail")
    if fused:
        A(f"s_cmp_ge_u32 s{IDX}, 28")
        A(f"s_cbranch_scc1 L_{name}_exit")
        ST("tail")
        accB, accA = stg[0:16], stg[16:32]
        wt = [stg[32:36], stg[36:40], stg[40:44], stg[44:48]]
        gemm_jit(A, accB, "0", oBf, wt, vWr, 1)
        A(f"s_lshl_b32 s{TW}, s{QB2}, 2"); A(f"s_add_u32 s{TW}, s{TW}, s{W_}"); A(f"s_lshl_b32 s{TW}, s{TW}, 15"); A(f"s_add_u32 s{TW}, s{TW}, {hx(WS_OA)}")
        A(f"v_and_b32 {t0}, 15, {lane}"); A(f"v_lshlrev_b32 {t0}, 11, {t0}"); A(f"v_add_u32 {t0}, 1024, {t0}")
        for k in range(32):
            for x in wo_reads(oBf[4*k:4*k+4], vWr, 0, k): A(x)
        A(f"s_mov_b32 s{CNT}, 0")
        ST("Bdone")
        A.label(f"L_{name}_pollA")
        A(f"buffer_load_dword {vfl}, {t0}, s[{sW}:{sW+3}], s{TW} offen sc1")
        A(f"s_add_u32 s{CNT}, s{CNT}, 1")
        A(f"s_cmp_gt_u32 s{CNT}, 0x40000")
        A(f"s_cbranch_scc1 L_{name}_loadA")
        A("s_waitcnt vmcnt(0)")
        A(f"v_cmp_eq_u32 vcc, -1, {vfl}")
        A(f"s_cbranch_vccnz L_{name}_pollA")
        A.label(f"L_{name}_loadA")
        ST("seen")
        A(f"s_mov_b32 s{T0}, s{TW}")
        oAf = big[0:128]
        for k in range(32):
            if k % 4 == 0 and k: A(f"s_add_u32 s{T0}, s{T0}, 4096")
            A(f"buffer_load_dwordx4 {oAf[4*k:4*k+4]}, {vL16}, s[{sW}:{sW+3}], s{T0} offen offset:{(k%4)*1024} sc1")
        A(f"v_mov_b32 {t1}, 0")
        A("s_waitcnt lgkmcnt(0)")
        for k in range(32):
            A(f"s_waitcnt vmcnt({31-k})")
            A(f"{MFMA} {accA}, {oBf[4*k:4*k+4]}, {oAf[4*k:4*k+4]}, {accB if k == 0 else accA}")
            A(f"v_max3_u32 {t1}, {t1}, {oAf[4*k]}, {oAf[4*k+1]}")
            A(f"v_max3_u32 {t1}, {t1}, {oAf[4*k+2]}, {oAf[4*k+3]}")
        A(f"v_cmp_eq_u32 vcc, -1, {t1}")
        A(f"s_add_u32 s{CNT}, s{CNT}, 1")
        A(f"s_cmp_gt_u32 s{CNT}, 0x40000")
        A(f"s_cbranch_scc1 L_{name}_store")
        A(f"s_cbranch_vccnz L_{name}_loadA")
        A.label(f"L_{name}_store")
        ST("Adone")
        out_store(A, accA, obuf, lane, t0, t1, sO, QB2, CT, W_, T0, T1)
    A.label(f"L_{name}_exit")
    if stamps:
        A("s_waitcnt vmcnt(0)"); ST("end"); ST("rt1", True); ST.flush(sW, W_, t0, t1, T0)
        gen_k2.names = ST.names
    A.label(f"L_{name}_end")
    A("s_endpgm")

    A.label(f"L_{name}_fb")
    mx = pq[4:8]
    kf, vf = KVr[0][0:8], KVr[0][8:16]
    for j in range(4): A(f"v_mov_b32 {mx[j]}, 0xff800000")
    def fb_loop(lbl, body, loadv):
        A(f"s_mov_b32 s{KO}, 0")
        A.label(lbl)
        for st in range(2): A(f"buffer_load_dwordx4 {kf[4*st:4*st+4]}, {vKV}, s[{sW}:{sW+3}], s{KO} offen offset:{st*1024}")
        if loadv:
            for st in range(2): A(f"buffer_load_dwordx4 {vf[4*st:4*st+4]}, {vKV}, s[{sW}:{sW+3}], s{KO} offen offset:{2048+st*1024}")
        A("s_waitcnt vmcnt(0)")
        for j in range(4):
            A(f"{MFMA} {Sb[0]}, {kf[0:4]}, {Q[j][0:4]}, 0")
            A(f"{MFMA} {Sb[0]}, {kf[4:8]}, {Q[j][4:8]}, {Sb[0]}")
            A("s_nop 11")
            body(j)
        A(f"s_add_u32 s{KO}, s{KO}, 4096")
        A(f"s_cmp_lt_u32 s{KO}, 0x10000")
        A(f"s_cbranch_scc1 {lbl}")
    def body_max(j):
        for i in range(0, 16, 2): A(f"v_max3_f32 {mx[j]}, {mx[j]}, {Sb[0][i]}, {Sb[0][i+1]}")
    fb_loop(f"L_{name}_fbmax", body_max, False)
    for j in range(4):
        A(f"s_add_u32 s{T0}, s{W_}, {j+1}"); A(f"s_and_b32 s{T0}, s{T0}, 3"); A(f"s_lshl_b32 s{T0}, s{T0}, 2"); A(f"s_add_u32 s{T0}, s{T0}, s{W_}"); A(f"s_lshl_b32 s{T0}, s{T0}, 8")
        A(f"v_lshl_add_u32 {t0}, {lane}, 2, s{T0}")
        A(f"ds_write_b32 {t0}, {mx[j]}")
    A("s_waitcnt lgkmcnt(0)")
    A("s_barrier")
    A(f"v_and_b32 {t2}, 31, {lane}")
    for j in range(4):
        A(f"s_add_u32 s{T0}, s{W_}, {j+1}"); A(f"s_and_b32 s{T0}, s{T0}, 3"); A(f"s_lshl_b32 s{T0}, s{T0}, 10")
        A(f"v_lshl_add_u32 {t0}, {t2}, 2, s{T0}")
        for i in range(8): A(f"ds_read_b32 {Sb[0][i]}, {t0} offset:{i*128}")
        A("s_waitcnt lgkmcnt(0)")
        A(f"v_max3_f32 {t1}, {Sb[0][0]}, {Sb[0][1]}, {Sb[0][2]}"); A(f"v_max3_f32 {t1}, {t1}, {Sb[0][3]}, {Sb[0][4]}")
        A(f"v_max3_f32 {t1}, {t1}, {Sb[0][5]}, {Sb[0][6]}"); A(f"v_max_f32 {t1}, {t1}, {Sb[0][7]}")
        A(f"v_sub_f32 {t1}, 0, {t1}")
        A(f"v_cvt_pk_bf16_f32 {t3}, {t1}, {t1}"); A(f"v_and_b32 {tp[0]}, 0xffff0000, {t3}"); A(f"v_sub_f32 {t1}, {t1}, {tp[0]}")
        A(f"v_cvt_pk_bf16_f32 {t3}, {t1}, {t1}"); A(f"v_and_b32 {tp[1]}, 0xffff0000, {t3}"); A(f"v_sub_f32 {t1}, {t1}, {tp[1]}")
        A("s_mov_b32 exec_lo, 0")
        A(f"v_cvt_pk_bf16_f32 {Q[j][6]}, {tp[0]}, {tp[1]}")
        A(f"v_cvt_pk_bf16_f32 {Q[j][7]}, {t1}, 0")
        A("s_mov_b32 exec_lo, -1")
    for j in range(4):
        for i in range(16): A(f"v_mov_b32 {O[j][i]}, 0")
    A("s_barrier")
    def body_pv(j):
        for i in range(16): A(f"v_exp_f32 {Sb[0][i]}, {Sb[0][i]}")
        A("s_nop 0")
        for i in range(8): A(f"v_cvt_pk_bf16_f32 {P[i]}, {Sb[0][2*i]}, {Sb[0][2*i+1]}")
        A("s_nop 1")
        A(f"{MFMA} {O[j]}, {vf[0:4]}, {P[0:4]}, {O[j]}")
        A(f"{MFMA} {O[j]}, {vf[4:8]}, {P[4:8]}, {O[j]}")
    fb_loop(f"L_{name}_fbpv", body_pv, True)
    A("s_nop 11")
    for j in range(3):
        A(f"s_add_u32 s{T2}, s{W_}, {j+1}"); A(f"s_and_b32 s{T2}, s{T2}, 3"); A(f"s_mul_i32 s{T2}, s{T2}, 12288")
        A(f"v_add_u32 {vRw}, s{T2}, {vL16}")
        for q in range(4): A(f"ds_write_b128 {vRw}, {O[j][4*q:4*q+4]} offset:{j*4096 + q*1024}")
    A("s_waitcnt lgkmcnt(0)")
    A("s_barrier")
    reduce_norm(False)
    A(f"s_cmp_eq_u32 s{OK}, 1")
    A(f"s_cbranch_scc1 L_{name}_tail")
    norm_store(O[3], t1, WS_OA)
    A(f"s_branch L_{name}_tail")
    return A.text(), kernel_desc(name, 256, 256, 102 if stamps else 64), (V.high, AG.high)

def gen_k3(name="proj_kernel"):
    A = Asm()
    V = Alloc("v", 1, 256); AG = Alloc("a", 0, 256)
    sW, sO, sA, sB = 16, 20, 24, 28
    W_, T0, T1, IDX, QB2, CT, TW = 36, 40, 41, 43, 44, 45, 48
    lane = V(); t0 = V(); t1 = V(); vL16 = V(); vWo = V(); vWr = V()
    oAf = V(128, 4); acc = V(16, 4); pk = V(8, 4); wt = [V(4, 4) for _ in range(4)]
    oBf = AG(128, 4)
    A(kernel_head(name))
    A("s_cmp_ge_u32 s2, 224")
    A(f"s_cbranch_scc1 L_{name}_end")
    A("s_load_dwordx2 s[4:5], s[0:1], 72"); A("s_load_dwordx2 s[6:7], s[0:1], 56")
    A("s_load_dwordx2 s[8:9], s[0:1], 16"); A("s_load_dwordx2 s[10:11], s[0:1], 40")
    A(f"v_lshrrev_b32 {t0}, 6, v0"); A(f"v_and_b32 {lane}, 63, v0"); A(f"v_readfirstlane_b32 s{W_}, {t0}")
    A(f"v_lshlrev_b32 {vL16}, 4, {lane}")
    tail_map(A, T0, IDX, QB2, CT)
    wo_addr(A, vWo, vWr, lane, t0, t1, CT, T0, 0)
    A("s_waitcnt lgkmcnt(0)")
    srd(A, sW, "s4", "s5", WS_USED); srd(A, sO, "s6", "s7", OUT_BYTES); srd(A, sA, "s8", "s9", WO_BYTES); srd(A, sB, "s10", "s11", WO_BYTES)
    for it in wo_dma_items(vWo, sA, sB, W_, TW, 0):
        for x in it:
            if not x.startswith("VM:"): A(x)
    A(f"s_lshl_b32 s{TW}, s{QB2}, 2"); A(f"s_add_u32 s{TW}, s{TW}, s{W_}"); A(f"s_lshl_b32 s{TW}, s{TW}, 15")
    for base, fr in ((WS_OB, oBf), (WS_OA, oAf)):
        A(f"s_add_u32 s{T0}, s{TW}, {hx(base)}")
        for k in range(32):
            if k % 4 == 0 and k: A(f"s_add_u32 s{T0}, s{T0}, 4096")
            A(f"buffer_load_dwordx4 {fr[4*k:4*k+4]}, {vL16}, s[{sW}:{sW+3}], s{T0} offen offset:{(k%4)*1024}")
            if base == WS_OB and k == 30:
                A("s_waitcnt vmcnt(31)"); A("s_barrier")
    gemm_jit(A, acc, "0", oBf, wt, vWr, 1, pre=lambda k: A("s_waitcnt vmcnt(32)") if k == 0 else None)
    gemm_jit(A, acc, acc, oAf, wt, vWr, 0, pre=lambda k: A(f"s_waitcnt vmcnt({31-k})"))
    out_store(A, acc, pk, lane, t0, t1, sO, QB2, CT, W_, T0, T1)
    A.label(f"L_{name}_end")
    A("s_endpgm")
    return A.text(), kernel_desc(name, 256, 128, 64), (V.high, AG.high)

if __name__ == "__main__":
    for f in (True, False):
        t, d, n = gen_k2(fused=f)
        print("k2 fused", f, n, "hazards", check_hazards(t), "lines", t.count("\n"))
    t, d, n = gen_k3()
    print("k3", n, "hazards", check_hazards(t), "lines", t.count("\n"))
```

```python
import build as B, k1, k2
def make(kind, stamps=False, **kw):
    t1, d1, _ = k1.gen_k1(stamps=stamps, **kw.get("k1", {}))
    ks = [("qkv_kernel", t1, d1, 256, 256, 163840)]
    t2, d2, _ = k2.gen_k2(fused=(kind == "two"), stamps=stamps, **kw.get("k2", {}))
    ks.append(("attn_kernel", t2, d2, 256, 256, k2.K2_LDS))
    if kind == "three":
        t3, d3, _ = k2.gen_k3()
        ks.append(("proj_kernel", t3, d3, 224, 256, 65536))
    return B.assemble(ks)
if __name__ == "__main__":
    import sys
    kind = sys.argv[1]; out = sys.argv[2]
    open(out, "w").write(make(kind))
```

```python
from dsl import *
import math
S_, D_, H_, DH = 2048, 448, 16, 28
XROW, WROW = 896, 2688
X_BYTES = S_ * XROW
W_BYTES = D_ * WROW
WO_BYTES = D_ * XROW
OUT_BYTES = S_ * XROW
WS_KV  = 0x000000
WS_QA  = 0x400000
WS_PQ  = 0x600000
WS_KVP = 0x800000
WS_G   = 0x900000
WS_FL  = 0x908000
WS_FKV = 0x910000
WS_FB  = 0x914000
WS_EP  = 0x90C000
WS_FO  = 0x920000
WS_FQ  = 0x918000
WS_FB4, WS_FKV4 = 0x940000, 0x948000
WS_QW  = 0x400000
WS_OA  = 0xA00000
WS_OB  = 0xC00000
WS_ST  = 0xE00000
WS_USED = 0xF00000
LOG2E = 1.4426950408889634
QSCALE = LOG2E / math.sqrt(DH)
import struct
def f32bits(x): return struct.unpack("<I", struct.pack("<f", x))[0]
def hx(x): return f"0x{x & 0xffffffff:x}"
ONES = 0x3F803F80
MFMA = "v_mfma_f32_32x32x16_bf16"

def srd(A, base, lo, hi, nbytes):
    A(f"s_mov_b32 s{base}, {lo}")
    A(f"s_mov_b32 s{base+1}, {hi}")
    A(f"s_mov_b32 s{base+2}, {hx(nbytes)}")
    A(f"s_mov_b32 s{base+3}, 0x20000")

def kernel_head(name):
    return f""".globl {name}
.p2align 8
.type {name},@function
{name}:
"""
def kernel_desc(name, nvgpr, nagpr, nsgpr=102):
    acc = (nvgpr + 3) // 4 * 4
    total = acc + nagpr if nagpr else nvgpr
    return f""".p2align 6
.amdhsa_kernel {name}
  .amdhsa_next_free_vgpr {total}
  .amdhsa_next_free_sgpr {nsgpr}
  .amdhsa_accum_offset {acc}
  .amdhsa_group_segment_fixed_size 0
  .amdhsa_kernarg_size 80
  .amdhsa_user_sgpr_count 2
  .amdhsa_user_sgpr_kernarg_segment_ptr 1
  .amdhsa_system_sgpr_workgroup_id_x 1
  .amdhsa_float_denorm_mode_32 3
.end_amdhsa_kernel
"""

def interleave(A, mfmas, fillers, per=None):
    n = len(mfmas); k = 0
    for i, m in enumerate(mfmas):
        A(m)
        left = len(fillers) - k
        take = -(-left // (n - i)) if per is None else min(left, per)
        for g in fillers[k:k + take]:
            for x in g: A(x)
        k += take
    for g in fillers[k:]:
        for x in g: A(x)

class Stamps:
    def __init__(self, A, on, kidx):
        self.A, self.on, self.n, self.kidx, self.names = A, on, 0, kidx, []
        self.b = [64, 72, 78][kidx]; self.kidx = min(kidx, 1)
    def __call__(self, name, real=False):
        if not self.on: return
        self.A(f"{'s_memrealtime' if real else 's_memtime'} s[{self.b+2*self.n}:{self.b+1+2*self.n}]"); self.n += 1; self.names.append(name)
    def flush(self, sW, W_, t0, t1, T0):
        if not self.on: return
        A = self.A
        A("s_waitcnt lgkmcnt(0)")
        A(f"s_lshl_b32 s{T0}, s2, 2"); A(f"s_add_u32 s{T0}, s{T0}, s{W_}"); A(f"s_lshl_b32 s{T0}, s{T0}, 7"); A(f"s_add_u32 s{T0}, s{T0}, {hx(WS_ST + self.kidx*0x20000)}")
        A(f"v_mov_b32 {t0}, 0")
        for i in range(self.n):
            A(f"v_mov_b32 {t1}, s{self.b+2*i}")
            A(f"buffer_store_dword {t1}, {t0}, s[{sW}:{sW+3}], s{T0} offen offset:{4*i}")
```

```python
from common import *

SLOT = 40960
def gen_k1(name="qkv_kernel", rot=True, stamps=False, ntx="", ntw="", stsc="", fake5=False, pf_code=None, pf_self=True, pf_wo=True):
    A = Asm()
    V = Alloc("v", 1, 256)
    sX, sM, sP, sG, sW = 16, 20, 24, 28, 32
    W_, R_, J_, QB, KC, XB, WB_, T0, T1, T2, A_, B_, LX, LM, LP = 36, 37, 38, 39, 40, 41, 42, 43, 44, 45, 46, 47, 48, 49, 50
    C0 = 51
    MK = 52
    KC0 = 54
    lane = V(); t0 = V(); t1 = V(); t2 = V(); t3 = V()
    vXA = V(); vXB = V(); vM = V(); vP = V(); vL16 = V()
    vXr = V(4); vT = V(3); vGa = V(); vG = V(7); vdum = V(); vpf = V()
    Xf = [V(8, 2), V(8, 2)]
    Wf = [V(12, 2), V(12, 2)]
    acc = [[V(16, 2) for t in range(3)] for rl in range(2)]
    ob = [[V(8, 2) for t in range(3)] for rl in range(2)]
    A(kernel_head(name))
    ST = Stamps(A, stamps, 0)
    A("s_cmp_ge_u32 s2, 256")
    A(f"s_cbranch_scc1 L_{name}_end")
    ST("rt0", True); ST("start")
    def fin():
        if stamps:
            n0 = ST.n; nm = list(ST.names)
            ST("stores"); A("s_waitcnt vmcnt(0)"); ST("end"); ST("rt1", True); ST.flush(sW, W_, t0, t1, T0)
            gen_k1.names = ST.names
            ST.n = n0; ST.names = nm
        A("s_endpgm")
    A("s_load_dwordx4 s[4:7], s[0:1], 0")
    A("s_load_dwordx2 s[8:9], s[0:1], 32")
    A("s_load_dwordx2 s[10:11], s[0:1], 48")
    A("s_load_dwordx2 s[12:13], s[0:1], 72")
    if pf_wo:
        A("s_load_dwordx2 s[56:57], s[0:1], 16"); A("s_load_dwordx2 s[58:59], s[0:1], 40")
    A(f"v_lshrrev_b32 {t0}, 6, v0")
    A(f"v_and_b32 {lane}, 63, v0")
    A(f"v_readfirstlane_b32 s{W_}, {t0}")
    def code_touch(first, last, dst, tmp):
        return [f"s_getpc_b64 s[14:15]", f"L_{name}_pc{code_touch.n}:",
                f"s_add_u32 s14, s14, {first}-L_{name}_pc{code_touch.n}", "s_addc_u32 s15, s15, 0",
                f"s_lshr_b32 s3, s2, 3", f"s_lshl_b32 s3, s3, 2", f"s_add_u32 s3, s3, s{W_}", "s_lshl_b32 s3, s3, 8",
                f"v_and_b32 {tmp}, 1, {lane}", f"v_lshlrev_b32 {tmp}, 7, {tmp}", f"v_add_u32 {tmp}, s3, {tmp}",
                f"v_min_u32 {tmp}, {last}-{first}-4, {tmp}",
                f"global_load_dword {dst}, {tmp}, s[14:15]"]
    code_touch.n = 0
    if pf_self:
        for x in code_touch(f"L_{name}_pc0", f"L_{name}_end", vdum, t0): A(x)
    A(f"s_and_b32 s{J_}, s2, 3")
    A(f"s_lshr_b32 s{T0}, s2, 3")
    A(f"s_and_b32 s{R_}, s{T0}, 3")
    A(f"s_lshr_b32 s{T1}, s{T0}, 2")
    A(f"s_bfe_u32 s{QB}, s2, 0x10002")
    A(f"s_lshl_b32 s{QB}, s{QB}, 3")
    A(f"s_add_u32 s{QB}, s{QB}, s{T1}")
    if rot == 2:
        A(f"s_bfe_u32 s{KC}, s2, 0x10003"); A(f"s_mul_i32 s{KC}, s{KC}, 3")
    elif rot == 3:
        A(f"s_lshl_b32 s{KC}, s{R_}, 1")
    elif rot:
        A(f"s_mul_i32 s{T1}, s2, 9363")
        A(f"s_lshr_b32 s{T1}, s{T1}, 16")
        A(f"s_mul_i32 s{T1}, s{T1}, 7")
        A(f"s_sub_u32 s{KC}, s2, s{T1}")
    else:
        A(f"s_mov_b32 s{KC}, 0")
    A(f"s_mov_b32 s{KC0}, s{KC}")
    A(f"s_and_b32 s{A_}, s{W_}, 1")
    A(f"s_lshr_b32 s{B_}, s{W_}, 1")
    A(f"s_lshl_b32 s{T0}, s{QB}, 2")
    A(f"s_add_u32 s{T0}, s{T0}, s{W_}")
    A(f"s_mul_i32 s{XB}, s{T0}, {32*XROW}")
    A(f"s_mul_i32 s{WB_}, s{W_}, {16*WROW}")
    A(f"s_lshl_b32 s{LX}, s{W_}, 12")
    A(f"s_add_u32 s{LM}, s{LX}, 16384")
    A(f"s_lshl_b32 s{LP}, s{W_}, 11")
    A(f"s_add_u32 s{LP}, s{LP}, 32768")
    A(f"v_lshrrev_b32 {t0}, 3, {lane}")
    A(f"v_and_b32 {t1}, 7, {lane}")
    A(f"v_xor_b32 {t2}, {t0}, {t1}")
    A(f"v_lshlrev_b32 {t2}, 4, {t2}")
    A(f"v_mul_u32_u24 {t3}, {XROW}, {t0}")
    A(f"v_add_u32 {vXA}, {t2}, {t3}")
    A(f"v_xor_b32 {vXB}, 16, {vXA}")
    A(f"v_lshlrev_b32 {t2}, 1, {t0}")
    A(f"v_and_b32 {t2}, 4, {t2}")
    A(f"v_xor_b32 {t2}, {t2}, {t1}")
    A(f"v_min_u32 {t2}, 6, {t2}")
    A(f"v_lshlrev_b32 {t2}, 4, {t2}")
    A(f"v_mul_u32_u24 {t3}, {WROW}, {t0}")
    A(f"s_lshl_b32 s{T0}, s{J_}, 1")
    A(f"s_and_b32 s{T1}, s{R_}, 1")
    A(f"s_add_u32 s{T0}, s{T0}, s{T1}")
    A(f"s_mul_i32 s{T0}, s{T0}, 112")
    A(f"v_add3_u32 {vP}, {t2}, {t3}, s{T0}")
    A(f"s_add_u32 s{T0}, s{T0}, 896")
    A(f"s_add_u32 s{T1}, s{R_}, 1")
    A(f"s_mul_i32 s{T1}, s{T1}, 896")
    A(f"s_mul_i32 s{T2}, s{J_}, 224")
    A(f"s_add_u32 s{T1}, s{T1}, s{T2}")
    A(f"s_cmp_lt_u32 s{R_}, 2")
    A(f"s_cselect_b32 s{T0}, s{T1}, s{T0}")
    A(f"s_cselect_b32 s{T1}, 4, 3")
    A(f"s_cselect_b32 s{T2}, 15, 7")
    A(f"s_cselect_b32 s55, 13, 6")
    A(f"v_lshrrev_b32 {t0}, 4, {lane}")
    A(f"v_lshlrev_b32 {t1}, 2, {t0}")
    A(f"v_sub_u32 {t1}, {lane}, {t1}")
    A(f"v_and_b32 {t1}, 15, {t1}")
    A(f"v_lshrrev_b32 {t2}, s{T1}, {t1}")
    A(f"v_mul_u32_u24 {t2}, 896, {t2}")
    A(f"v_and_b32 {t1}, s{T2}, {t1}")
    A(f"v_min_u32 {t1}, s55, {t1}")
    A(f"v_lshl_add_u32 {t1}, {t1}, 4, {t2}")
    A(f"v_mul_u32_u24 {t3}, {WROW}, {t0}")
    A(f"v_add3_u32 {vM}, {t1}, {t3}, s{T0}")
    if fake5:
        A("s_lshr_b32 s60, s2, 3"); A("s_cmp_ge_u32 s60, 28"); A(f"s_cbranch_scc1 L_{name}_end")
        A("s_mul_i32 s61, s60, 37"); A("s_lshr_b32 s61, s61, 8")
        A("s_mul_i32 s62, s61, 7"); A("s_sub_u32 s62, s60, s62")
        A("s_bfe_u32 s63, s2, 0x20001"); A("s_lshl_b32 s63, s63, 2"); A(f"s_add_u32 s63, s63, s61")
        A(f"s_lshl_b32 s63, s63, 2"); A(f"s_add_u32 s63, s63, s{W_}"); A(f"s_mul_i32 s{XB}, s63, {32*XROW}")
        A("s_mul_i32 s62, s62, 384")
        A(f"v_lshrrev_b32 {t0}, 4, {lane}"); A(f"v_lshlrev_b32 {t1}, 2, {t0}"); A(f"v_sub_u32 {t1}, {lane}, {t1}"); A(f"v_and_b32 {t1}, 15, {t1}")
        A(f"v_lshlrev_b32 {t1}, 4, {t1}"); A(f"v_mul_u32_u24 {t3}, {WROW}, {t0}"); A(f"v_add3_u32 {vM}, {t1}, {t3}, s62")
        A("s_add_u32 s62, s62, 256")
        A(f"v_lshrrev_b32 {t0}, 3, {lane}"); A(f"v_and_b32 {t1}, 7, {lane}"); A(f"v_lshlrev_b32 {t1}, 4, {t1}"); A(f"v_mul_u32_u24 {t3}, {WROW}, {t0}"); A(f"v_add3_u32 {vP}, {t1}, {t3}, s62")
    A(f"v_and_b32 {t2}, 15, {lane}")
    A(f"s_lshl_b32 s{T0}, s{W_}, 4")
    A(f"v_add_u32 {t2}, s{T0}, {t2}")
    A(f"v_lshlrev_b32 {vGa}, 1, {t2}")
    A("s_waitcnt lgkmcnt(0)")
    srd(A, sX, "s4", "s5", X_BYTES)
    A(f"s_cmp_lt_u32 s{R_}, 2")
    if fake5: A("s_bitcmp0_b32 s2, 0")
    A(f"s_cselect_b32 s{sM}, s6, s8"); A(f"s_cselect_b32 s{sM+1}, s7, s9")
    if fake5:
        A(f"s_cselect_b32 s{sP}, s6, s8"); A(f"s_cselect_b32 s{sP+1}, s7, s9")
    else:
        A(f"s_cselect_b32 s{sP}, s8, s6"); A(f"s_cselect_b32 s{sP+1}, s9, s7")
    for b in (sM, sP):
        A(f"s_mov_b32 s{b+2}, {hx(W_BYTES)}"); A(f"s_mov_b32 s{b+3}, 0x20000")
    srd(A, sG, "s10", "s11", 896)
    srd(A, sW, "s12", "s13", WS_USED)
    vm = VmQ()
    if pf_self: vm.issue("pf")
    if pf_wo:
        A(f"s_lshr_b32 s{T0}, s2, 3"); A(f"s_lshl_b32 s{T0}, s{T0}, 2"); A(f"s_add_u32 s{T0}, s{T0}, s{W_}")
        A(f"s_cmp_lt_u32 s{T0}, 64")
        A("s_cselect_b32 s8, s56, s58"); A("s_cselect_b32 s9, s57, s59"); A(f"s_mov_b32 s10, {hx(WO_BYTES)}"); A("s_mov_b32 s11, 0x20000")
        A(f"s_and_b32 s{T0}, s{T0}, 63"); A(f"s_mul_i32 s{T0}, s{T0}, 49")
        A(f"v_min_u32 {vpf}, 48, {lane}"); A(f"v_add_lshl_u32 {vpf}, {vpf}, s{T0}, 7")
    ST("args")
    def dma_groups(i):
        sl = (i & 3) * SLOT
        g = []
        first = [f"s_lshl_b32 s{T0}, s{KC}, 7", f"s_add_u32 s{T0}, s{T0}, s{XB}", f"s_add_u32 m0, s{LX}, {sl}"]
        for blk in range(4):
            pre = first if blk == 0 else [f"s_add_u32 s{T0}, s{T0}, 6144"]
            if blk == 0: pre = pre + ["s_nop 0"]
            g.append(pre + [f"buffer_load_dwordx4 {vXA if blk < 2 else vXB}, s[{sX}:{sX+3}], s{T0} offen offset:{blk*1024} {ntx} lds"])
        for q in range(4):
            pre = [f"s_mul_i32 s{T1}, s{KC}, {64*WROW}", f"s_add_u32 m0, s{LM}, {sl}", f"s_add_u32 s{T1}, s{T1}, s{WB_}", f"s_mov_b32 s{T2}, s{T1}"] if q == 0 else [f"s_add_u32 s{T1}, s{T1}, {4*WROW-1024}"]
            g.append(pre + [f"buffer_load_dwordx4 {vM}, s[{sM}:{sM+3}], s{T1} offen offset:{q*1024} {ntw} lds"])
        for q in range(2):
            pre = [f"s_add_u32 m0, s{LP}, {sl}", f"s_add_u32 s{KC}, s{KC}, 1"] if q == 0 else [f"s_add_u32 s{T2}, s{T2}, {8*WROW-1024}"]
            post = [] if q == 0 else [f"s_cmp_eq_u32 s{KC}, 7", f"s_cselect_b32 s{KC}, 0, s{KC}"]
            g.append(pre + [f"buffer_load_dwordx4 {vP}, s[{sP}:{sP+3}], s{T2} offen offset:{q*1024} {ntw} lds"] + post)
        return g
    for x in dma_groups(0):
        for y in x: A(y)
        vm.issue("c0")
    A(f"s_mov_b32 s{T0}, s{KC0}")
    for i in range(7):
        A(f"s_lshl_b32 s{T1}, s{T0}, 7")
        A(f"buffer_load_ushort {vG[i]}, {vGa}, s[{sG}:{sG+3}], s{T1} offen"); vm.issue(f"g{i}")
        if i < 6:
            A(f"s_add_u32 s{T0}, s{T0}, 1"); A(f"s_cmp_eq_u32 s{T0}, 7"); A(f"s_cselect_b32 s{T0}, 0, s{T0}")
    A(f"v_lshlrev_b32 {vL16}, 4, {lane}")
    A(f"v_lshlrev_b32 {t3}, 5, {t2}")
    A(f"v_and_b32 {t3}, 64, {t3}")
    A(f"v_sub_u32 {t3}, 112, {t3}")
    A(f"v_lshl_add_u32 {t3}, {t2}, 7, {t3}")
    A(f"v_add_u32 {vGa}, 32768, {t3}")
    A(f"v_and_b32 {t0}, 7, {lane}")
    A(f"v_bfe_u32 {t1}, {lane}, 3, 2")
    A(f"v_lshrrev_b32 {t2}, 5, {lane}")
    A(f"v_xor_b32 {t2}, {t2}, {t0}")
    A(f"v_lshrrev_b32 {t3}, 1, {t1}")
    A(f"v_xor_b32 {t2}, {t2}, {t3}")
    A(f"v_lshlrev_b32 {t2}, 4, {t2}")
    A(f"v_lshl_add_u32 {t2}, {t0}, 7, {t2}")
    A(f"v_lshl_add_u32 {t2}, {t1}, 10, {t2}")
    A(f"s_lshl_b32 s{T0}, s{B_}, 13")
    A(f"v_add_u32 {vXr[0]}, s{T0}, {t2}")
    for j in range(1, 4):
        A(f"v_xor_b32 {vXr[j]}, {32*j}, {vXr[0]}")
    A(f"v_bfe_u32 {t0}, {lane}, 2, 2")
    A(f"v_and_b32 {t1}, 3, {lane}")
    A(f"v_lshlrev_b32 {t1}, 3, {t1}")
    A(f"v_and_b32 {t2}, 16, {lane}")
    A(f"v_lshl_add_u32 {t1}, {t2}, 1, {t1}")
    A(f"v_lshrrev_b32 {t2}, 5, {lane}")
    A(f"v_lshl_add_u32 {t2}, {t2}, 3, {t0}")
    A(f"s_mul_i32 s{T0}, s{A_}, 56")
    A(f"s_lshl_b32 s{T1}, s{T0}, 1")
    A(f"s_cmp_lt_u32 s{R_}, 2")
    A(f"s_cselect_b32 s{T1}, s{T1}, s{T0}")
    A(f"s_cselect_b32 s{T2}, 56, 0x80")
    A(f"s_add_u32 s{T2}, s{T2}, s{T1}")
    A(f"v_lshl_add_u32 {t3}, {t0}, 6, {t1}")
    for t, sreg in ((0, T1), (1, T2)):
        A(f"v_add_u32 {vT[t]}, s{sreg}, {t3}")
        A(f"v_and_b32 {vT[t]}, 0xff, {vT[t]}")
        A(f"v_lshl_add_u32 {vT[t]}, {t2}, 8, {vT[t]}")
        A(f"v_add_u32 {vT[t]}, 16384, {vT[t]}")
    A(f"v_lshlrev_b32 {t3}, 5, {t0}")
    A(f"v_and_b32 {t3}, 64, {t3}")
    A(f"v_add3_u32 {t3}, {t3}, {t1}, s{T0}")
    A(f"v_and_b32 {t3}, 0x7f, {t3}")
    A(f"v_lshl_add_u32 {t3}, {t2}, 7, {t3}")
    A(f"v_add_u32 {vT[2]}, 32768, {t3}")
    for x in dma_groups(1):
        for y in x: A(y)
        vm.issue("c1")
    A("s_cmp_lg_u32 s2, 0")
    A(f"s_cbranch_scc1 L_{name}_nofl")
    for i in range(4): A(f"v_mov_b32 {ob[0][0][i]}, 0")
    A(f"s_lshl_b32 s{T0}, s{W_}, 10")
    A(f"s_add_u32 s{T0}, s{T0}, {hx(WS_FL)}")
    A(f"buffer_store_dwordx4 {ob[0][0][0:4]}, {vL16}, s[{sW}:{sW+3}], s{T0} offen")
    A("s_waitcnt vmcnt(0)")
    A.label(f"L_{name}_nofl")
    A(f"s_cmp_lg_u32 s{R_}, 0")
    A(f"s_cbranch_scc1 L_{name}_N")

    def reads(ks, buf):
        r = []
        for rl in range(2):
            r.append([f"ds_read_b128 {Xf[buf][4*rl:4*rl+4]}, {vXr[ks]} offset:{rl*4096}"])
        for t in range(3):
            for half in range(2):
                off = ks*4096 + half*1024 if t < 2 else ks*2048 + half*512
                r.append([f"ds_read_b64_tr_b16 {Wf[buf][4*t+2*half:4*t+2*half+2]}, {vT[t]} offset:{off}"])
        return r
    def mainloop(variant, prefill):
        q = VmQ(); q.q = list(vm.q)
        n = q.wait_for(["c0", "g0"])
        A(f"s_waitcnt vmcnt({n})")
        ST.n = 3; ST.names = ST.names[:3]
        ST("c0")
        A(f"ds_write_b16 {vGa}, {vG[0]}")
        A(f"v_add_u32 {vGa}, {SLOT}, {vGa}")
        A("s_waitcnt lgkmcnt(0)")
        A("s_barrier")
        for g in reads(0, 0): A(g[0])
        step = 0
        pf = list(prefill)
        for i in range(7):
            dm = dma_groups(i + 2) if i + 2 < 7 else []
            for ks in range(4):
                buf = step & 1
                m = []
                for t in range(3):
                    for rl in range(2):
                        x, w = Xf[buf][4*rl:4*rl+4], Wf[buf][4*t:4*t+4]
                        c = "0" if step == 0 else str(acc[rl][t])
                        m.append(f"{MFMA} {acc[rl][t]}, {w}, {x}, {c}" if variant[t] == "T" else f"{MFMA} {acc[rl][t]}, {x}, {w}, {c}")
                A("s_waitcnt lgkmcnt(0)")
                if ks < 3:
                    rd = reads(ks + 1, buf ^ 1)
                    d = dm[4*ks:4*ks+4]
                    for x in d: q.issue(f"c{i+2}")
                    fill = [sum(rd[0:2], []), sum(rd[2:4], []) + (d[0] if len(d) > 0 else []), sum(rd[4:6], []) + (d[1] if len(d) > 1 else []),
                            sum(rd[6:8], []) + (d[2] if len(d) > 2 else []), (d[3] if len(d) > 3 else []), []]
                    for k in range(6):
                        if pf: fill[k] = fill[k] + [pf.pop()]
                    if i == 5 and ks == 0:
                        if pf_wo: fill[4] = fill[4] + [f"buffer_load_dword {vdum}, {vpf}, s[8:11], 0 offen"]; q.issue("pf")
                        if pf_code:
                            code_touch.n += 1
                            fill[5] = fill[5] + code_touch(pf_code[0], pf_code[1], vdum, t0); q.issue("pf")
                    interleave(A, m, fill, per=1)
                elif i < 6:
                    n = q.wait_for([f"c{i+1}", f"g{i+1}"])
                    delta = SLOT if (i + 1) & 3 else -3 * SLOT
                    delta2 = SLOT if (i + 2) & 3 else -3 * SLOT
                    upd = [f"v_add_u32 {x}, {hx(delta)}, {x}" for x in [vXr[k] for k in range(4)] + [vT[k] for k in range(3)]]
                    rd = reads(0, buf ^ 1)
                    fill = [[f"s_waitcnt vmcnt({n})", f"ds_write_b16 {vGa}, {vG[i+1]}"] + upd[:4],
                            upd[4:] + [f"v_add_u32 {vGa}, {hx(delta2)}, {vGa}", "s_waitcnt lgkmcnt(0)", "s_barrier"] + sum(rd[0:2], []),
                            sum(rd[2:5], []), sum(rd[5:8], []), [], []]
                    interleave(A, m, fill, per=1)
                else:
                    for x in m: A(x)
                step += 1
                if ks == 3 and i in (0, 3): ST(f"it{i}")
        ST("loop")
        assert not pf
    def cvt_tile(rl, t, lo, hi):
        for i in range(lo, hi):
            A(f"v_cvt_pk_bf16_f32 {ob[rl][t][i]}, {acc[rl][t][2*i]}, {acc[rl][t][2*i+1]}")
    def phi_tile(rl, t, extra=()):
        x = acc[rl][t]
        tmp = Xf[0]
        ex = list(extra)
        def pop():
            if ex:
                for y in ex.pop(0): A(y)
        for g in range(0, 16, 8):
            for i in range(8): A(f"v_mul_f32 {tmp[i]}, s{T2}, {x[g+i]}")
            pop()
            for i in range(8): A(f"v_exp_f32_e64 {tmp[i]}, {tmp[i]} clamp")
            for i in range(8): A(f"v_max_f32 {x[g+i]}, s55, {x[g+i]}")
            pop()
            for i in range(8): A(f"v_add_f32 {x[g+i]}, {x[g+i]}, {tmp[i]}")
        assert not ex
    def store_items(rl, t, sreg, extra):
        return [[f"buffer_store_dwordx4 {ob[rl][t][4*st:4*st+4]}, {vL16}, s[{sW}:{sW+3}], s{sreg} offen offset:{extra+1024*st} {stsc}"] for st in range(2)]
    def store_tile(rl, t, sreg, extra):
        A(f"buffer_store_dwordx4 {ob[rl][t][0:4]}, {vL16}, s[{sW}:{sW+3}], s{sreg} offen offset:{extra} {stsc}")
        A(f"buffer_store_dwordx4 {ob[rl][t][4:8]}, {vL16}, s[{sW}:{sW+3}], s{sreg} offen offset:{extra+1024} {stsc}")
    def kv_addr():
        A(f"s_lshl_b32 s{T0}, s{J_}, 1"); A(f"s_add_u32 s{T0}, s{T0}, s{A_}"); A(f"s_lshl_b32 s{T0}, s{T0}, 7")
        A(f"s_lshl_b32 s{T1}, s{QB}, 1"); A(f"s_add_u32 s{T1}, s{T1}, s{B_}"); A(f"s_lshl_b32 s{T1}, s{T1}, 1")
        A(f"s_add_u32 s{T0}, s{T0}, s{T1}"); A(f"s_lshl_b32 s{T0}, s{T0}, 12")
    def pair_head(dst):
        A(f"s_lshl_b32 s{dst}, s{J_}, 1"); A(f"s_and_b32 s{T1}, s{R_}, 1"); A(f"s_add_u32 s{dst}, s{dst}, s{T1}")
        A(f"s_lshl_b32 s{dst}, s{dst}, 1"); A(f"s_add_u32 s{dst}, s{dst}, s{A_}")
    def q_addr(base):
        pair_head(T0)
        A(f"s_lshl_b32 s{T0}, s{T0}, 6")
        A(f"s_lshl_b32 s{T1}, s{QB}, 1"); A(f"s_add_u32 s{T1}, s{T1}, s{B_}"); A(f"s_lshl_b32 s{T1}, s{T1}, 1")
        A(f"s_add_u32 s{T0}, s{T0}, s{T1}"); A(f"s_lshl_b32 s{T0}, s{T0}, 11"); A(f"s_add_u32 s{T0}, s{T0}, {hx(base)}")
    def q_pack():
        for rl in range(2): cvt_tile(rl, 2, 0, 6)
        A("s_mov_b64 exec, 0xffffffff")
        for rl in range(2): cvt_tile(rl, 2, 6, 8)
        A("s_mov_b64 exec, -1")

    pre = []
    for rl in range(2):
        for t in range(2):
            pre += [f"v_mov_b32 {ob[rl][t][6]}, {hx(ONES)}", f"v_mov_b32 {ob[rl][t][7]}, 0x3f80"]
        pre += [f"v_mov_b32 {ob[rl][2][6]}, 0", f"v_mov_b32 {ob[rl][2][7]}, 0"]
    mainloop("TTT", pre)
    kv_addr()
    A("s_nop 1")
    for t in range(2):
        for rl in range(2): cvt_tile(rl, t, 0, 6)
    A("s_mov_b64 exec, 0xffffffff")
    for t in range(2):
        for rl in range(2): cvt_tile(rl, t, 6, 8)
    A("s_mov_b64 exec, -1")
    A(f"s_cmp_lg_u32 s{J_}, 0"); A(f"s_cbranch_scc1 L_{name}_qB")
    A(f"s_cmp_lg_u32 s{A_}, 1"); A(f"s_cbranch_scc1 L_{name}_qB")
    A(f"s_mov_b32 s{T2}, {hx(f32bits(-LOG2E))}")
    A(f"v_and_b32 {t2}, 31, {lane}")
    A(f"v_lshlrev_b32 {t2}, 2, {t2}")
    A(f"s_lshl_b32 s{T1}, s{QB}, 1"); A(f"s_add_u32 s{T1}, s{T1}, s{B_}"); A(f"s_lshl_b32 s{T1}, s{T1}, 8"); A(f"s_add_u32 s{T1}, s{T1}, {hx(WS_G)}")
    for rl, tt in ((0, t0), (1, t1)): A(f"v_mul_f32 {tt}, s{T2}, {acc[rl][2][12]}")
    for tt in (t0, t1): A(f"v_exp_f32 {tt}, {tt}")
    A("s_nop 0")
    for tt in (t0, t1): A(f"v_add_f32 {tt}, 1.0, {tt}")
    for tt in (t0, t1): A(f"v_rcp_f32 {tt}, {tt}")
    A("s_mov_b32 exec_lo, 0")
    A(f"buffer_store_dword {t0}, {t2}, s[{sW}:{sW+3}], s{T1} offen")
    A(f"buffer_store_dword {t1}, {t2}, s[{sW}:{sW+3}], s{T1} offen offset:128")
    A("s_mov_b32 exec_lo, -1")
    A.label(f"L_{name}_qB")
    A(f"s_mov_b32 s{T2}, {hx(f32bits(LOG2E))}")
    A(f"s_mov_b32 s55, {hx(f32bits(1e-6))}")
    for t in range(2):
        it = []
        for rl in range(2):
            x = store_items(rl, t, T0, 0)
            x[1] = x[1] + [f"s_add_u32 s{T0}, s{T0}, {4096 if rl == 0 else 64*4096-4096}"]
            it += x
        phi_tile(t, 2, it)
    q_addr(WS_PQ)
    q_pack()
    for rl in range(2): store_tile(rl, 2, T0, rl * 2048)
    fin()

    A.label(f"L_{name}_N")
    A(f"s_cmp_eq_u32 s{R_}, 1")
    A(f"s_cselect_b32 s{C0}, {hx(ONES)}, 0")
    pre = []
    for rl in range(2):
        pre += [f"v_mov_b32 {ob[rl][0][i]}, s{C0}" for i in range(8)]
        pre += [f"v_mov_b32 {ob[rl][1][i]}, {hx(ONES)}" for i in range(8)]
        pre += [f"v_mov_b32 {ob[rl][2][6]}, 0", f"v_mov_b32 {ob[rl][2][7]}, 0"]
    mainloop("NNT", pre)
    A(f"s_cmp_lg_u32 s{R_}, 1")
    A(f"s_cbranch_scc1 L_{name}_B")
    kv_addr()
    A(f"s_add_u32 s{T0}, s{T0}, 2048")
    A("s_mov_b32 exec_lo, 0xefffffff"); A("s_mov_b32 exec_hi, 0xefffffff")
    for t in range(2):
        for rl in range(2): cvt_tile(rl, t, 0, 8)
    A("s_mov_b64 exec, -1")
    A(f"s_branch L_{name}_qB")
    A.label(f"L_{name}_B")
    q_addr(WS_QA)
    A("s_mov_b32 exec_lo, 0xefffffff"); A("s_mov_b32 exec_hi, 0xefffffff")
    for rl in range(2): cvt_tile(rl, 1, 0, 8)
    A("s_mov_b64 exec, -1")
    A(f"s_mov_b32 s{T2}, {hx(f32bits(QSCALE))}")
    for rl in range(2):
        for i in range(16): A(f"v_mul_f32 {acc[rl][2][i]}, s{T2}, {acc[rl][2][i]}")
    q_pack()
    A(f"s_mov_b32 s{T2}, {hx(f32bits(LOG2E))}")
    A(f"s_mov_b32 s55, {hx(f32bits(1e-6))}")
    kvp = acc[0][1]
    for rl in range(2):
        phi_tile(rl, 0, store_items(rl, 2, T0, rl * 2048))
        A("s_mov_b32 exec_lo, 0x0fffffff"); A("s_mov_b32 exec_hi, 0x0fffffff")
        cvt_tile(rl, 0, 0, 8)
        A("s_mov_b64 exec, -1")
        A("s_nop 0")
        for st in range(2):
            A(f"{MFMA} {kvp}, {ob[rl][0][4*st:4*st+4]}, {ob[rl][1][4*st:4*st+4]}, {'0' if rl == 0 and st == 0 else kvp}")
    A(f"s_lshl_b32 s{T0}, s{W_}, 11")
    A(f"v_add_u32 {t0}, s{T0}, {vL16}")
    A(f"v_xor_b32 {t1}, 0x1000, {t0}")
    pair_head(T0)
    A(f"s_lshl_b32 s{T0}, s{T0}, 1"); A(f"s_add_u32 s{T0}, s{T0}, s{B_}"); A(f"s_lshl_b32 s{T0}, s{T0}, 5"); A(f"s_add_u32 s{T0}, s{T0}, s{QB}")
    A(f"s_lshl_b32 s{T0}, s{T0}, 10"); A(f"s_add_u32 s{T0}, s{T0}, {hx(WS_KVP)}"); A(f"s_add_u32 s{T1}, s{T0}, 16384")
    A(f"s_cmp_eq_u32 s{B_}, 1")
    A(f"s_cbranch_scc1 L_{name}_b1")
    for b in range(2):
        if b == 1: A.label(f"L_{name}_b1")
        snd, keep = kvp[8*(1-b):8*(1-b)+8], kvp[8*b:8*b+8]
        A(f"ds_write_b128 {t0}, {snd[0:4]}")
        A(f"ds_write_b128 {t0}, {snd[4:8]} offset:1024")
        A("s_waitcnt lgkmcnt(0)")
        A("s_barrier")
        A(f"ds_read_b128 {Xf[0][0:4]}, {t1}")
        A(f"ds_read_b128 {Xf[0][4:8]}, {t1} offset:1024")
        A("s_waitcnt lgkmcnt(0)")
        for i in range(8): A(f"v_add_f32 {keep[i]}, {keep[i]}, {Xf[0][i]}")
        A(f"buffer_store_dwordx4 {keep[0:4]}, {vL16}, s[{sW}:{sW+3}], s{T0} offen {stsc}")
        A(f"buffer_store_dwordx4 {keep[4:8]}, {vL16}, s[{sW}:{sW+3}], s{T1} offen {stsc}")
        fin()
    A.label(f"L_{name}_end")
    A("s_endpgm")
    return A.text(), kernel_desc(name, V.high, 0, 102 if stamps else 64), V.high

if __name__ == "__main__":
    t, d, n = gen_k1()
    print("vgprs", n, "hazards", check_hazards(t), "lines", t.count("\n"))
```

```python
from common import *
from collections import deque

L_RED, L_WO, L_KVX, L_VOTE = 0, 49152, 114688, 116736
K2_LDS = 118784
SENT = 0xFFFFFFFF

class TailRegs: pass

def tail_map(A, T0, IDX, QB2, CT):
    A(f"s_lshr_b32 s{IDX}, s2, 3")
    A(f"s_and_b32 s{T0}, s2, 7")
    A(f"s_lshl_b32 s{QB2}, s{T0}, 1")
    A(f"s_cmp_ge_u32 s{IDX}, 14")
    A(f"s_cselect_b32 s{T0}, 14, 0")
    A(f"s_addc_u32 s{QB2}, s{QB2}, 0")
    A(f"s_sub_u32 s{CT}, s{IDX}, s{T0}")

def wo_dma_items(vWo, sA, sB, W_, T, lbase):
    it = []
    for br, srd_ in ((1, sB), (0, sA)):
        for q in range(8):
            pre = []
            if q % 4 == 0:
                pre = [[f"s_lshl_b32 s{T}, s{W_}, 13"], [f"s_add_u32 m0, s{T}, {lbase + br*32768 + q*1024}"],
                       [f"s_mul_i32 s{T}, s{W_}, {128*XROW}"]]
                if q: pre.append([f"s_add_u32 s{T}, s{T}, {q*16*XROW}"])
            else:
                pre = [[f"s_add_u32 s{T}, s{T}, {16*XROW-1024}"]]
            it += pre + [[f"buffer_load_dwordx4 {vWo}, s[{srd_}:{srd_+3}], s{T} offen offset:{(q%4)*1024} lds", "VM:wo"]]
    return it

def wo_addr(A, vWo, vWr, lane, t0, t1, CT, T0, lbase):
    A(f"v_lshrrev_b32 {t0}, 2, {lane}")
    A(f"v_mul_u32_u24 {t0}, {XROW}, {t0}")
    A(f"v_and_b32 {t1}, 3, {lane}")
    A(f"v_lshl_add_u32 {t0}, {t1}, 4, {t0}")
    A(f"s_lshl_b32 s{T0}, s{CT}, 6")
    A(f"v_add_u32 {vWo}, s{T0}, {t0}")
    A(f"v_lshlrev_b32 {t1}, 3, {t1}")
    A(f"v_and_b32 {t0}, 16, {lane}")
    A(f"v_lshl_add_u32 {t1}, {t0}, 1, {t1}")
    A(f"v_bfe_u32 {t0}, {lane}, 2, 2")
    A(f"v_lshl_add_u32 {t1}, {t0}, 6, {t1}")
    A(f"v_lshrrev_b32 {t0}, 5, {lane}")
    A(f"v_lshl_add_u32 {t1}, {t0}, 8, {t1}")
    A(f"v_add_u32 {vWr}, {lbase}, {t1}")

def wo_reads(dst, vWr, br, k):
    h, st = k >> 1, k & 1
    o = br*32768 + (28*h + 16*st)*64
    return [f"ds_read_b64_tr_b16 {dst[0:2]}, {vWr} offset:{o}", f"ds_read_b64_tr_b16 {dst[2:4]}, {vWr} offset:{o+512}"]

def gemm_jit(A, acc, cinit, ofr, wtmp, vWr, br, pre=None):
    nb = len(wtmp)
    for k in range(nb - 1):
        for x in wo_reads(wtmp[k], vWr, br, k): A(x)
    for k in range(32):
        kk = k + nb - 1
        if kk < 32:
            for x in wo_reads(wtmp[kk % nb], vWr, br, kk): A(x)
        left = min(31 - k, nb - 1)
        A(f"s_waitcnt lgkmcnt({2*left})")
        if pre: pre(k)
        A(f"{MFMA} {acc}, {wtmp[k % nb]}, {ofr[4*k:4*k+4]}, {cinit if k == 0 else acc}")

def out_store(A, acc, pk, lane, t0, t1, sO, QB2, CT, W_, T0, T1):
    A(f"v_and_b32 {t0}, 31, {lane}")
    A(f"v_mul_u32_u24 {t0}, {XROW}, {t0}")
    A(f"v_lshrrev_b32 {t1}, 5, {lane}")
    A(f"v_lshl_add_u32 {t0}, {t1}, 4, {t0}")
    A(f"s_lshl_b32 s{T0}, s{QB2}, 2"); A(f"s_add_u32 s{T0}, s{T0}, s{W_}"); A(f"s_mul_i32 s{T0}, s{T0}, {32*XROW}")
    A(f"s_lshl_b32 s{T1}, s{CT}, 6"); A(f"s_add_u32 s{T0}, s{T0}, s{T1}")
    A("s_nop 2")
    for i in range(8): A(f"v_cvt_pk_bf16_f32 {pk[i]}, {acc[2*i]}, {acc[2*i+1]}")
    A("s_nop 0")
    for p in (0, 4):
        A(f"v_permlane32_swap_b32 {pk[p]}, {pk[p+2]}")
        A(f"v_permlane32_swap_b32 {pk[p+1]}, {pk[p+3]}")
    A(f"buffer_store_dwordx4 {pk[0:4]}, {t0}, s[{sO}:{sO+3}], s{T0} offen")
    A(f"buffer_store_dwordx4 {pk[4:8]}, {t0}, s[{sO}:{sO+3}], s{T0} offen offset:32")

def gen_k2(name="attn_kernel", fused=True, bblock_at=20, poll_at=48, force_fallback=False, NB=5, QM=3, stamps=False, fine=False, no_wo=False, no_ob=False):
    A = Asm()
    V = Alloc("v", 1, 256); AG = Alloc("a", 0, 256)
    sW, sO, sA, sB = 16, 20, 24, 28
    W_, H, QB, KO, T0, T1, T2, IDX, QB2, CT, OK, OSL, TW, CNT = 36, 37, 38, 39, 40, 41, 42, 43, 44, 45, 46, 47, 48, 49
    SC = "sc1" if fused else ""
    lane = V(); t0 = V(); t1 = V(); t2 = V(); t3 = V(); vL16 = V(); vKV = V(); vg = V(); vWo = V(); vWr = V(); vRw = V(); vRr = V(); vfl = V()
    tp = V(2, 2)
    big = V(136, 4)
    Q = [big[8*j:8*j+8] for j in range(4)]
    Sb = [big[32:48], big[48:64]]
    P = big[64:72]
    O = [big[72+16*j:88+16*j] for j in range(4)]
    stg = V(64, 4)
    pq = V(8, 4); obuf = V(8, 4)
    KVr = [AG(16, 4) for _ in range(NB)]
    oBf = AG(128, 4)
    A(kernel_head(name))
    ST = Stamps(A, stamps, 1)
    A("s_cmp_ge_u32 s2, 256")
    A(f"s_cbranch_scc1 L_{name}_end")
    ST("rt0", True); ST("start")
    A("s_load_dwordx2 s[4:5], s[0:1], 72")
    if fused:
        A("s_load_dwordx2 s[6:7], s[0:1], 56")
        A("s_load_dwordx2 s[8:9], s[0:1], 16")
        A("s_load_dwordx2 s[10:11], s[0:1], 40")
    A(f"v_lshrrev_b32 {t0}, 6, v0")
    A(f"v_and_b32 {lane}, 63, v0")
    A(f"v_readfirstlane_b32 s{W_}, {t0}")
    A(f"s_and_b32 s{H}, s2, 7"); A(f"s_lshl_b32 s{H}, s{H}, 1"); A(f"s_bfe_u32 s{T0}, s2, 0x10003"); A(f"s_add_u32 s{H}, s{H}, s{T0}")
    A(f"s_lshr_b32 s{QB}, s2, 4")
    A(f"v_lshlrev_b32 {vL16}, 4, {lane}")
    A(f"s_lshl_b32 s{T0}, s{H}, 2"); A(f"s_add_u32 s{T0}, s{T0}, s{W_}"); A(f"s_lshl_b32 s{T0}, s{T0}, 16")
    A(f"v_add_u32 {vKV}, s{T0}, {vL16}")
    A(f"s_lshl_b32 s{KO}, s{QB}, 12")
    A(f"s_lshl_b32 s{T1}, s{H}, 4"); A(f"s_add_u32 s{T1}, s{T1}, s{QB}"); A(f"s_lshl_b32 s{T1}, s{T1}, 13"); A(f"s_add_u32 s{T1}, s{T1}, {hx(WS_QA)}")
    for j in range(4):
        A(f"s_add_u32 s{T0}, s{W_}, {j+1}"); A(f"s_and_b32 s{T0}, s{T0}, 3"); A(f"s_lshl_b32 s{T0}, s{T0}, 11"); A(f"s_add_u32 s{52+j}, s{T0}, s{T1}")
    A("s_waitcnt lgkmcnt(0)")
    srd(A, sW, "s4", "s5", WS_USED)
    vm = VmQ()
    def emit(item):
        for x in item:
            if x.startswith("VM:"): vm.issue(x[3:]); issued[x[3:]] = issued.get(x[3:], 0) + 1
            else: A(x)
    issued = {}
    def ldq(j):
        return [[f"buffer_load_dwordx4 {Q[j][4*st:4*st+4]}, {vL16}, s[{sW}:{sW+3}], s{52+j} offen offset:{st*1024}", f"VM:Q{j}"] for st in range(2)]
    def ldk(n): return [[f"buffer_load_dwordx4 {KVr[n%NB][4*st:4*st+4]}, {vKV}, s[{sW}:{sW+3}], s{KO} offen offset:{st*1024}", f"VM:K{n}"] for st in range(2)]
    def ldv(n): return [[f"buffer_load_dwordx4 {KVr[n%NB][8+4*st:12+4*st]}, {vKV}, s[{sW}:{sW+3}], s{KO} offen offset:{2048+st*1024}", f"VM:V{n}"] for st in range(2)]
    adv = [[f"s_add_u32 s{KO}, s{KO}, 4096"], [f"s_and_b32 s{KO}, s{KO}, 0xffff"]]
    pro = ldq(0) + ldk(0) + ldq(1) + ldv(0) + adv + ldq(2) + ldq(3)
    for n in range(1, NB - 1): pro += ldk(n) + ldv(n) + adv
    for it in pro: emit(it)
    if fused:
        srd(A, sO, "s6", "s7", OUT_BYTES); srd(A, sA, "s8", "s9", WO_BYTES); srd(A, sB, "s10", "s11", WO_BYTES)
        tail_map(A, T0, IDX, QB2, CT)
        wo_addr(A, vWo, vWr, lane, t0, t1, CT, T0, L_WO)
    A(f"s_lshl_b32 s{T0}, s{QB}, 2"); A(f"s_add_u32 s{T0}, s{T0}, s{W_}")
    A(f"s_lshl_b32 s{OSL}, s{T0}, 4"); A(f"s_add_u32 s{OSL}, s{OSL}, s{H}"); A(f"s_lshl_b32 s{OSL}, s{OSL}, 11")
    A(f"s_mul_i32 s{T1}, s{W_}, 12288")
    A(f"v_add_u32 {vRr}, s{T1}, {vL16}")
    for i in (6, 7): A(f"v_mov_b32 {obuf[i]}, 0")
    A(f"v_and_b32 {vfl}, 31, {lane}"); A(f"v_lshlrev_b32 {vfl}, 2, {vfl}")

    order = [(n, j) for n in range(16 - QM) for j in range(4)] + [(n, j) for j in range(4) for n in range(16 - QM, 16)]
    firstO = set()
    def qk(t, st):
        n, j = order[t]
        return (f"{MFMA} {Sb[t&1]}, {KVr[n%NB][4*st:4*st+4]}, {Q[j][4*st:4*st+4]}, {'0' if st == 0 else Sb[t&1]}", [f"K{n}", f"Q{j}"])
    def pv(t, st):
        n, j = order[t]
        c = O[j] if j in firstO else "0"
        firstO.add(j)
        return (f"{MFMA} {O[j]}, {KVr[n%NB][8+4*st:12+4*st]}, {P[4*st:4*st+4]}, {c}", [f"V{n}"])
    ex = lambda t, i: f"v_exp_f32 {Sb[t&1][i]}, {Sb[t&1][i]}"
    cv = lambda t, i: f"v_cvt_pk_bf16_f32 {P[i]}, {Sb[t&1][2*i]}, {Sb[t&1][2*i+1]}"
    slots = []
    for t in range(64):
        slots.append((qk(t+1, 0) if t < 63 else None, [ex(t, i) for i in range(0, 4)]))
        slots.append((qk(t+1, 1) if t < 63 else None, [cv(t, 0), cv(t, 1)] + [ex(t, i) for i in range(4, 8)]))
        slots.append((pv(t-1, 1) if t > 0 else None, [cv(t, 2), cv(t, 3)] + [ex(t, i) for i in range(8, 12)]))
        slots.append((pv(t, 0), [cv(t, 4), cv(t, 5)] + [ex(t, i) for i in range(12, 16)] + [cv(t, 6), cv(t, 7)]))
    hi, lo = [], []
    lastK = {n: max(4*(t-1)+1 for t in range(64) if order[t][0] == n) for n in range(16)}
    lastV = {n: max(4*(t+1)+2 for t in range(64) if order[t][0] == n) for n in range(16)}
    for n in range(NB - 1, 16):
        p = n - NB
        eK = max(lastK[p] if p >= 0 else 0, (n - NB + 1) * 16); eV = max(lastV[p] if p >= 0 else 0, eK)
        hi.append((eK, ldk(n))); hi.append((eV, ldv(n) + adv))
    bl = [[f"s_lshl_b32 s{T1}, s{H}, 2"], [f"s_add_u32 s{T1}, s{T1}, s{W_}"], [f"s_lshl_b32 s{T1}, s{T1}, 14"], [f"s_add_u32 s{T1}, s{T1}, {hx(WS_KVP)}"]]
    for b in range(16):
        if b % 4 == 0 and b: bl.append([f"s_add_u32 s{T1}, s{T1}, 4096"])
        bl.append([f"buffer_load_dwordx4 {stg[4*b:4*b+4]}, {vL16}, s[{sW}:{sW+3}], s{T1} offen offset:{(b%4)*1024}", "VM:kvp"])
    bl.append([f"s_add_u32 s{T1}, s55, {WS_PQ - WS_QA}"])
    for st in range(2): bl.append([f"buffer_load_dwordx4 {pq[4*st:4*st+4]}, {vL16}, s[{sW}:{sW+3}], s{T1} offen offset:{st*1024}", "VM:kvp"])
    bl += [[f"s_lshr_b32 s{T1}, s{OSL}, 15"], [f"s_lshl_b32 s{T1}, s{T1}, 7"], [f"s_add_u32 s{T1}, s{T1}, {hx(WS_G)}"],
           [f"buffer_load_dword {vg}, {vfl}, s[{sW}:{sW+3}], s{T1} offen", "VM:kvp"]]
    lo.append((2, bl))
    if fused:
        if not no_wo: lo.append(((bblock_at + 1) * 4, wo_dma_items(vWo, sA, sB, W_, TW, L_WO)))
        lo.append(((bblock_at + 12) * 4, ["FLAG"]))
        lo.append(((poll_at - 4) * 4, [[f"s_lshl_b32 s{TW}, s{QB2}, 2"], [f"s_add_u32 s{TW}, s{TW}, s{W_}"], [f"s_lshl_b32 s{T1}, s{TW}, 6"], [f"s_add_u32 s{T1}, s{T1}, {hx(WS_FL)}"],
                   [f"buffer_load_dword {vfl}, {t3}, s[{sW}:{sW+3}], s{T1} offen sc1", "VM:flld"],
                   [f"s_lshl_b32 s{TW}, s{TW}, 15"], [f"s_add_u32 s{TW}, s{TW}, {hx(WS_OB)}"]]))
        ol = []
        for k in range(32):
            if k % 4 == 0 and k: ol.append([f"s_add_u32 s{TW}, s{TW}, 4096"])
            ol.append([f"buffer_load_dwordx4 {oBf[4*k:4*k+4]}, {vL16}, s[{sW}:{sW+3}], s{TW} offen offset:{(k%4)*1024} sc1", "VM:oB"])
        if not no_ob: lo.append((poll_at * 4 + 1, ol))
    for j in range(3):
        tl = max(t for t in range(64) if order[t][1] == j)
        hi.append((tl * 4, [[f"s_add_u32 s{T2}, s{W_}, {j+1}"], [f"s_and_b32 s{T2}, s{T2}, 3"], [f"s_mul_i32 s{T2}, s{T2}, 12288"]]))
        wr = [[f"v_add_u32 {vRw}, s{T2}, {vL16}"]] + [[f"ds_write_b128 {vRw}, {O[j][4*q:4*q+4]} offset:{j*4096 + q*1024}"] for q in range(4)]
        if j == 2:
            wr += [["s_waitcnt lgkmcnt(0)", "s_barrier"]]
            rd = [f"ds_read_b128 {stg[16*jj+4*q:16*jj+4*q+4]}, {vRr} offset:{jj*4096 + q*1024}" for jj in range(3) for q in range(4)]
            wr += [rd[i:i+3] for i in range(0, 12, 3)]
        hi.append(((tl + 1) * 4 + 4, wr))
    hi.sort(key=lambda e: e[0]); lo.sort(key=lambda e: e[0])
    ph, pl = deque(), deque()

    def norm_store(acc, gfac, base, sent=False):
        for i in range(16): A(f"v_mul_f32 {acc[i]}, {gfac}, {acc[i]}")
        A(f"s_add_u32 s{T0}, s{OSL}, {hx(base)}")
        for i in range(6): A(f"v_cvt_pk_bf16_f32 {obuf[i]}, {acc[2*i]}, {acc[2*i+1]}")
        A("s_mov_b64 exec, 0xffffffff")
        for i in (6, 7): A(f"v_cvt_pk_bf16_f32 {obuf[i]}, {acc[2*i]}, {acc[2*i+1]}")
        A("s_mov_b64 exec, -1")
        for st in range(2):
            A(f"buffer_store_dwordx4 {obuf[4*st:4*st+4]}, {vL16}, s[{sW}:{sW+3}], s{T0} offen offset:{st*1024} {SC}"); vm.issue("ost")
    def bcast_den(acc):
        A(f"v_mov_b32 {t1}, {acc[12]}")
        A("s_nop 1")
        A(f"v_permlane32_swap_b32 {acc[12]}, {t1}")

    def bblock():
        n = vm.wait_for("kvp")
        if n is not None: A(f"s_waitcnt vmcnt({n})")
        for lvl in (32, 16, 8, 4):
            for i in range(0, lvl, 2):
                A(f"v_pk_add_f32 {stg[i:i+2]}, {stg[i:i+2]}, {stg[lvl+i:lvl+i+2]}")
        A(f"s_lshr_b32 s{T0}, s{W_}, 1"); A(f"s_lshl_b32 s{T0}, s{T0}, 10"); A(f"s_and_b32 s{T1}, s{W_}, 1"); A(f"s_lshl_b32 s{T1}, s{T1}, 3")
        A(f"s_add_u32 s{T0}, s{T0}, s{T1}")
        A(f"v_add_u32 {t0}, s{T0}, {vL16}")
        A(f"v_cvt_pk_bf16_f32 {tp[0]}, {stg[0]}, {stg[1]}")
        A(f"v_cvt_pk_bf16_f32 {tp[1]}, {stg[2]}, {stg[3]}")
        A(f"v_add_u32 {t0}, {L_KVX}, {t0}")
        A(f"v_add_u32 {t2}, {L_KVX}, {vL16}")
        A(f"ds_write_b64 {t0}, {tp}")
        if fused:
            for i in range(4): A(f"v_mov_b32 {stg[40+i]}, -1")
            A(f"s_add_u32 s{T0}, s{OSL}, {hx(WS_OA)}")
            for st in range(2):
                A(f"buffer_store_dwordx4 {stg[40:44]}, {vL16}, s[{sW}:{sW+3}], s{T0} offen offset:{st*1024} sc1"); vm.issue("ost")
        A("s_waitcnt lgkmcnt(0)")
        A("s_barrier")
        A(f"ds_read_b128 {stg[4:8]}, {t2}")
        A(f"ds_read_b128 {stg[8:12]}, {t2} offset:1024")
        A(f"v_sub_f32 {t3}, 1.0, {vg}")
        A("s_waitcnt lgkmcnt(1)")
        num = stg[16:32]
        A(f"{MFMA} {num}, {stg[4:8]}, {pq[0:4]}, 0")
        A("s_waitcnt lgkmcnt(0)")
        A(f"{MFMA} {num}, {stg[8:12]}, {pq[4:8]}, {num}")
        A("s_nop 11")
        bcast_den(num)
        A(f"v_add_f32 {t1}, {hx(f32bits(1e-6))}, {t1}")
        A(f"v_rcp_f32 {t1}, {t1}")
        A("s_nop 0")
        A(f"v_mul_f32 {t1}, {t1}, {t3}")
        norm_store(num, t1, WS_OB)
        A(f"v_and_b32 {t3}, 15, {lane}"); A(f"v_lshlrev_b32 {t3}, 2, {t3}")

    m, need = qk(0, 0)
    A(f"s_waitcnt vmcnt({vm.wait_for(need)})"); A(m); A(qk(0, 1)[0])
    ST("first")
    A("s_nop 9")
    def place(it):
        if it == "FLAG":
            n = vm.wait_for("ost")
            if n is not None: A(f"s_waitcnt vmcnt({n})")
            A(f"s_lshr_b32 s{T0}, s{OSL}, 9"); A(f"s_add_u32 s{T0}, s{T0}, {hx(WS_FL)}")
            A(f"v_mov_b32 {t0}, 0"); A(f"v_mov_b32 {t1}, 1")
            A("s_mov_b64 exec, 1")
            A(f"buffer_store_dword {t1}, {t0}, s[{sW}:{sW+3}], s{T0} offen sc1"); vm.issue("fl")
            A("s_mov_b64 exec, -1")
        else: emit(it)
    for i, (mf, valu) in enumerate(slots):
        if fine and i % 16 == 0 and i: ST(f"t{i//4}")
        if i % 4 == 0 and i // 4 == bblock_at:
            assert issued.get("kvp") == 19 and not pl, (issued, pl)
            if not fine: ST("b0")
            bblock()
            if not fine: ST("b1")
        if fused and i % 4 == 0 and i // 4 == poll_at:
            assert issued.get("flld") == 1 and not pl
            n = vm.wait_for("flld")
            if n is not None: A(f"s_waitcnt vmcnt({n})")
            A(f"s_mov_b32 s{CNT}, 0")
            A.label(f"L_{name}_pollB")
            A(f"v_cmp_ne_u32 vcc, 1, {vfl}")
            A(f"s_cbranch_vccz L_{name}_pollB_done")
            A(f"buffer_load_dword {vfl}, {t3}, s[{sW}:{sW+3}], s{T1} offen sc1")
            A(f"s_add_u32 s{CNT}, s{CNT}, 1")
            A(f"s_cmp_lt_u32 s{CNT}, 0x40000")
            A("s_waitcnt vmcnt(0)")
            A(f"s_cbranch_scc1 L_{name}_pollB")
            A.label(f"L_{name}_pollB_done")
        while hi and hi[0][0] <= i: ph.extend(hi.pop(0)[1])
        while lo and lo[0][0] <= i: pl.extend(lo.pop(0)[1])
        if mf is not None:
            for tg in mf[1]: assert issued.get(tg) == 2, (i, tg)
            n = vm.wait_for(mf[1])
            if n is not None: A(f"s_waitcnt vmcnt({n})")
            A(mf[0])
        nxt = slots[i+1][0] if i + 1 < len(slots) else None
        if nxt is not None and any(tg in vm.q for tg in nxt[1]) and all(issued.get(tg) == 2 for tg in nxt[1]):
            A(f"s_waitcnt vmcnt({vm.wait_for(nxt[1])})")
        elif ph: place(ph.popleft())
        elif pl: place(pl.popleft())
        for x in valu: A(x)
    assert not hi and not lo
    A("s_nop 0")
    while ph: place(ph.popleft())
    A(pv(63, 1)[0])
    while pl: place(pl.popleft())
    ST("loop")

    def reduce_norm(check):
        if not check:
            for j in range(3):
                for q in range(4): A(f"ds_read_b128 {stg[16*j+4*q:16*j+4*q+4]}, {vRr} offset:{j*4096 + q*1024}")
        A("s_waitcnt lgkmcnt(4)")
        for i in range(0, 16, 2): A(f"v_pk_add_f32 {stg[i:i+2]}, {stg[i:i+2]}, {stg[16+i:18+i]}")
        A("s_waitcnt lgkmcnt(0)")
        for i in range(0, 16, 2): A(f"v_pk_add_f32 {stg[i:i+2]}, {stg[i:i+2]}, {stg[32+i:34+i]}")
        for i in range(0, 16, 2): A(f"v_pk_add_f32 {O[3][i:i+2]}, {O[3][i:i+2]}, {stg[i:i+2]}")
        if check:
            A(f"v_pk_mul_f32 {tp}, {O[3][0:2]}, 0")
            for i in range(2, 16, 2): A(f"v_pk_fma_f32 {tp}, {O[3][i:i+2]}, 0, {tp}")
        bcast_den(O[3])
        if check:
            A(f"v_add_f32 {t2}, {tp[0]}, {tp[1]}")
            A(f"v_add_f32 {t2}, {t2}, {t1}")
            lo, hi = (2.0**-60, 2.0**60) if not force_fallback else (2.0**30, 2.0**60)
            A(f"v_cmp_le_f32 vcc, {hx(f32bits(lo))}, {t2}")
            A(f"s_mov_b32 s{T1}, {hx(f32bits(hi))}")
            A(f"v_cmp_ge_f32 s[50:51], s{T1}, {t2}")
        A(f"v_rcp_f32 {t1}, {t1}")
        if check:
            A("s_and_b64 vcc, vcc, s[50:51]")
            A("s_cmp_eq_u64 vcc, -1")
            A(f"s_cselect_b32 s{OK}, 1, 0")
        else: A("s_nop 0")
        A(f"v_mul_f32 {t1}, {t1}, {vg}")
    reduce_norm(True)
    A(f"s_cbranch_scc0 L_{name}_vote")
    norm_store(O[3], t1, WS_OA)
    A.label(f"L_{name}_vote")
    (None if fine else ST("pub"))
    A(f"s_lshl_b32 s{T0}, s{W_}, 2"); A(f"s_add_u32 s{T0}, s{T0}, {L_VOTE}")
    A(f"v_mov_b32 {t0}, s{T0}"); A(f"v_mov_b32 {t1}, s{OK}"); A(f"v_mov_b32 {t2}, {L_VOTE}")
    A(f"ds_write_b32 {t0}, {t1}")
    if fused: A("s_waitcnt vmcnt(2) lgkmcnt(0)")
    else: A("s_waitcnt lgkmcnt(0)")
    A("s_barrier")
    A(f"ds_read_b128 {pq[0:4]}, {t2}")
    A("s_waitcnt lgkmcnt(0)")
    A(f"v_and_b32 {t0}, {pq[0]}, {pq[1]}"); A(f"v_and_b32 {t1}, {pq[2]}, {pq[3]}"); A(f"v_and_b32 {t0}, {t0}, {t1}")
    A("s_nop 0")
    A(f"v_readfirstlane_b32 s{T0}, {t0}")
    A(f"s_cmp_eq_u32 s{T0}, 0")
    A(f"s_cbranch_scc1 L_{name}_fb")
    A.label(f"L_{name}_tail")
    if fused:
        A(f"s_cmp_ge_u32 s{IDX}, 28")
        A(f"s_cbranch_scc1 L_{name}_exit")
        (None if fine else ST("tail"))
        accB, accA = stg[0:16], stg[16:32]
        wt = [stg[32:36], stg[36:40], stg[40:44], stg[44:48]]
        gemm_jit(A, accB, "0", oBf, wt, vWr, 1)
        A(f"s_lshl_b32 s{TW}, s{QB2}, 2"); A(f"s_add_u32 s{TW}, s{TW}, s{W_}"); A(f"s_lshl_b32 s{TW}, s{TW}, 15"); A(f"s_add_u32 s{TW}, s{TW}, {hx(WS_OA)}")
        A(f"v_and_b32 {t0}, 15, {lane}"); A(f"v_lshlrev_b32 {t0}, 11, {t0}"); A(f"v_add_u32 {t0}, 1024, {t0}")
        for k in range(32):
            for x in wo_reads(oBf[4*k:4*k+4], vWr, 0, k): A(x)
        A(f"s_mov_b32 s{CNT}, 0")
        (None if fine else ST("Bdone"))
        A.label(f"L_{name}_pollA")
        A(f"buffer_load_dword {vfl}, {t0}, s[{sW}:{sW+3}], s{TW} offen sc1")
        A(f"s_add_u32 s{CNT}, s{CNT}, 1")
        A(f"s_cmp_gt_u32 s{CNT}, 0x40000")
        A(f"s_cbranch_scc1 L_{name}_loadA")
        A("s_waitcnt vmcnt(0)")
        A(f"v_cmp_eq_u32 vcc, -1, {vfl}")
        A(f"s_cbranch_vccnz L_{name}_pollA")
        A.label(f"L_{name}_loadA")
        (None if fine else ST("seen"))
        A(f"s_mov_b32 s{T0}, s{TW}")
        oAf = big[0:128]
        for k in range(32):
            if k % 4 == 0 and k: A(f"s_add_u32 s{T0}, s{T0}, 4096")
            A(f"buffer_load_dwordx4 {oAf[4*k:4*k+4]}, {vL16}, s[{sW}:{sW+3}], s{T0} offen offset:{(k%4)*1024} sc1")
        A(f"v_mov_b32 {t1}, 0")
        A("s_waitcnt lgkmcnt(0)")
        for k in range(32):
            A(f"s_waitcnt vmcnt({31-k})")
            A(f"{MFMA} {accA}, {oBf[4*k:4*k+4]}, {oAf[4*k:4*k+4]}, {accB if k == 0 else accA}")
            A(f"v_max3_u32 {t1}, {t1}, {oAf[4*k]}, {oAf[4*k+1]}")
            A(f"v_max3_u32 {t1}, {t1}, {oAf[4*k+2]}, {oAf[4*k+3]}")
        A(f"v_cmp_eq_u32 vcc, -1, {t1}")
        A(f"s_add_u32 s{CNT}, s{CNT}, 1")
        A(f"s_cmp_gt_u32 s{CNT}, 0x40000")
        A(f"s_cbranch_scc1 L_{name}_store")
        A(f"s_cbranch_vccnz L_{name}_loadA")
        A.label(f"L_{name}_store")
        (None if fine else ST("Adone"))
        out_store(A, accA, obuf, lane, t0, t1, sO, QB2, CT, W_, T0, T1)
    A.label(f"L_{name}_exit")
    if stamps:
        A("s_waitcnt vmcnt(0)"); ST("end"); ST("rt1", True); ST.flush(sW, W_, t0, t1, T0)
        gen_k2.names = ST.names
    A.label(f"L_{name}_end")
    A("s_endpgm")

    A.label(f"L_{name}_fb")
    mx = pq[4:8]
    kf, vf = KVr[0][0:8], KVr[0][8:16]
    for j in range(4): A(f"v_mov_b32 {mx[j]}, 0xff800000")
    def fb_loop(lbl, body, loadv):
        A(f"s_mov_b32 s{KO}, 0")
        A.label(lbl)
        for st in range(2): A(f"buffer_load_dwordx4 {kf[4*st:4*st+4]}, {vKV}, s[{sW}:{sW+3}], s{KO} offen offset:{st*1024}")
        if loadv:
            for st in range(2): A(f"buffer_load_dwordx4 {vf[4*st:4*st+4]}, {vKV}, s[{sW}:{sW+3}], s{KO} offen offset:{2048+st*1024}")
        A("s_waitcnt vmcnt(0)")
        for j in range(4):
            A(f"{MFMA} {Sb[0]}, {kf[0:4]}, {Q[j][0:4]}, 0")
            A(f"{MFMA} {Sb[0]}, {kf[4:8]}, {Q[j][4:8]}, {Sb[0]}")
            A("s_nop 11")
            body(j)
        A(f"s_add_u32 s{KO}, s{KO}, 4096")
        A(f"s_cmp_lt_u32 s{KO}, 0x10000")
        A(f"s_cbranch_scc1 {lbl}")
    def body_max(j):
        for i in range(0, 16, 2): A(f"v_max3_f32 {mx[j]}, {mx[j]}, {Sb[0][i]}, {Sb[0][i+1]}")
    fb_loop(f"L_{name}_fbmax", body_max, False)
    for j in range(4):
        A(f"s_add_u32 s{T0}, s{W_}, {j+1}"); A(f"s_and_b32 s{T0}, s{T0}, 3"); A(f"s_lshl_b32 s{T0}, s{T0}, 2"); A(f"s_add_u32 s{T0}, s{T0}, s{W_}"); A(f"s_lshl_b32 s{T0}, s{T0}, 8")
        A(f"v_lshl_add_u32 {t0}, {lane}, 2, s{T0}")
        A(f"ds_write_b32 {t0}, {mx[j]}")
    A("s_waitcnt lgkmcnt(0)")
    A("s_barrier")
    A(f"v_and_b32 {t2}, 31, {lane}")
    for j in range(4):
        A(f"s_add_u32 s{T0}, s{W_}, {j+1}"); A(f"s_and_b32 s{T0}, s{T0}, 3"); A(f"s_lshl_b32 s{T0}, s{T0}, 10")
        A(f"v_lshl_add_u32 {t0}, {t2}, 2, s{T0}")
        for i in range(8): A(f"ds_read_b32 {Sb[0][i]}, {t0} offset:{i*128}")
        A("s_waitcnt lgkmcnt(0)")
        A(f"v_max3_f32 {t1}, {Sb[0][0]}, {Sb[0][1]}, {Sb[0][2]}"); A(f"v_max3_f32 {t1}, {t1}, {Sb[0][3]}, {Sb[0][4]}")
        A(f"v_max3_f32 {t1}, {t1}, {Sb[0][5]}, {Sb[0][6]}"); A(f"v_max_f32 {t1}, {t1}, {Sb[0][7]}")
        A(f"v_sub_f32 {t1}, 0, {t1}")
        A(f"v_cvt_pk_bf16_f32 {t3}, {t1}, {t1}"); A(f"v_and_b32 {tp[0]}, 0xffff0000, {t3}"); A(f"v_sub_f32 {t1}, {t1}, {tp[0]}")
        A(f"v_cvt_pk_bf16_f32 {t3}, {t1}, {t1}"); A(f"v_and_b32 {tp[1]}, 0xffff0000, {t3}"); A(f"v_sub_f32 {t1}, {t1}, {tp[1]}")
        A("s_mov_b32 exec_lo, 0")
        A(f"v_cvt_pk_bf16_f32 {Q[j][6]}, {tp[0]}, {tp[1]}")
        A(f"v_cvt_pk_bf16_f32 {Q[j][7]}, {t1}, 0")
        A("s_mov_b32 exec_lo, -1")
    for j in range(4):
        for i in range(16): A(f"v_mov_b32 {O[j][i]}, 0")
    A("s_barrier")
    def body_pv(j):
        for i in range(16): A(f"v_exp_f32 {Sb[0][i]}, {Sb[0][i]}")
        A("s_nop 0")
        for i in range(8): A(f"v_cvt_pk_bf16_f32 {P[i]}, {Sb[0][2*i]}, {Sb[0][2*i+1]}")
        A("s_nop 1")
        A(f"{MFMA} {O[j]}, {vf[0:4]}, {P[0:4]}, {O[j]}")
        A(f"{MFMA} {O[j]}, {vf[4:8]}, {P[4:8]}, {O[j]}")
    fb_loop(f"L_{name}_fbpv", body_pv, True)
    A("s_nop 11")
    for j in range(3):
        A(f"s_add_u32 s{T2}, s{W_}, {j+1}"); A(f"s_and_b32 s{T2}, s{T2}, 3"); A(f"s_mul_i32 s{T2}, s{T2}, 12288")
        A(f"v_add_u32 {vRw}, s{T2}, {vL16}")
        for q in range(4): A(f"ds_write_b128 {vRw}, {O[j][4*q:4*q+4]} offset:{j*4096 + q*1024}")
    A("s_waitcnt lgkmcnt(0)")
    A("s_barrier")
    reduce_norm(False)
    A(f"s_cmp_eq_u32 s{OK}, 1")
    A(f"s_cbranch_scc1 L_{name}_tail")
    norm_store(O[3], t1, WS_OA)
    A(f"s_branch L_{name}_tail")
    return A.text(), kernel_desc(name, 256, 256, 102 if stamps else 64), (V.high, AG.high)

def gen_k3(name="proj_kernel"):
    A = Asm()
    V = Alloc("v", 1, 256); AG = Alloc("a", 0, 256)
    sW, sO, sA, sB = 16, 20, 24, 28
    W_, T0, T1, IDX, QB2, CT, TW = 36, 40, 41, 43, 44, 45, 48
    lane = V(); t0 = V(); t1 = V(); vL16 = V(); vWo = V(); vWr = V()
    oAf = V(128, 4); acc = V(16, 4); pk = V(8, 4); wt = [V(4, 4) for _ in range(4)]
    oBf = AG(128, 4)
    A(kernel_head(name))
    A("s_cmp_ge_u32 s2, 224")
    A(f"s_cbranch_scc1 L_{name}_end")
    A("s_load_dwordx2 s[4:5], s[0:1], 72"); A("s_load_dwordx2 s[6:7], s[0:1], 56")
    A("s_load_dwordx2 s[8:9], s[0:1], 16"); A("s_load_dwordx2 s[10:11], s[0:1], 40")
    A(f"v_lshrrev_b32 {t0}, 6, v0"); A(f"v_and_b32 {lane}, 63, v0"); A(f"v_readfirstlane_b32 s{W_}, {t0}")
    A(f"v_lshlrev_b32 {vL16}, 4, {lane}")
    tail_map(A, T0, IDX, QB2, CT)
    wo_addr(A, vWo, vWr, lane, t0, t1, CT, T0, 0)
    A("s_waitcnt lgkmcnt(0)")
    srd(A, sW, "s4", "s5", WS_USED); srd(A, sO, "s6", "s7", OUT_BYTES); srd(A, sA, "s8", "s9", WO_BYTES); srd(A, sB, "s10", "s11", WO_BYTES)
    for it in wo_dma_items(vWo, sA, sB, W_, TW, 0):
        for x in it:
            if not x.startswith("VM:"): A(x)
    A(f"s_lshl_b32 s{TW}, s{QB2}, 2"); A(f"s_add_u32 s{TW}, s{TW}, s{W_}"); A(f"s_lshl_b32 s{TW}, s{TW}, 15")
    for base, fr in ((WS_OB, oBf), (WS_OA, oAf)):
        A(f"s_add_u32 s{T0}, s{TW}, {hx(base)}")
        for k in range(32):
            if k % 4 == 0 and k: A(f"s_add_u32 s{T0}, s{T0}, 4096")
            A(f"buffer_load_dwordx4 {fr[4*k:4*k+4]}, {vL16}, s[{sW}:{sW+3}], s{T0} offen offset:{(k%4)*1024}")
            if base == WS_OB and k == 30:
                A("s_waitcnt vmcnt(31)"); A("s_barrier")
    gemm_jit(A, acc, "0", oBf, wt, vWr, 1, pre=lambda k: A("s_waitcnt vmcnt(32)") if k == 0 else None)
    gemm_jit(A, acc, acc, oAf, wt, vWr, 0, pre=lambda k: A(f"s_waitcnt vmcnt({31-k})"))
    out_store(A, acc, pk, lane, t0, t1, sO, QB2, CT, W_, T0, T1)
    A.label(f"L_{name}_end")
    A("s_endpgm")
    return A.text(), kernel_desc(name, 256, 128, 64), (V.high, AG.high)

if __name__ == "__main__":
    for f in (True, False):
        t, d, n = gen_k2(fused=f)
        print("k2 fused", f, n, "hazards", check_hazards(t), "lines", t.count("\n"))
    t, d, n = gen_k3()
    print("k3", n, "hazards", check_hazards(t), "lines", t.count("\n"))
```

```python
from common import *
from collections import deque

L_RED, L_WO, WO_IMG = 0, 49152, 57344
L_KVX, L_MAX = 8192, 8192
K2_LDS = 163840
SPIN = 0x40000

def gen_k2(name="attn_kernel", bb=16, poll_at=47, force_fallback=False, NB=4, QM=3, stamps=False, fine=False, rotm=3, pace=2,
           flag_lag=10, direct=False):
    A = Asm()
    V = Alloc("v", 1, 256); AG = Alloc("a", 0, 256)
    sW, sO, sA, sB = 16, 20, 24, 28
    W_, H, QB, KO, T0, T1, T2, IDX, RT2, CG, OK, OSL, TW, CNT, KH = 36, 37, 38, 39, 40, 41, 42, 43, 44, 45, 46, 47, 48, 49, 52
    KOS = [KO, 3] + [0, 1] + list(range(4, 16))
    WOS = [32, 33, 34, 35]; WL = 54
    KVPB, PQB, GB, OAS, OBS, FLO, FLT, OBT = 56, 57, 58, 59, 60, 61, 62, 53
    RED = [63, 64, 65]; KVXA = 66
    lane = V(); t0 = V(); t1 = V(); t2 = V(); t3 = V(); vL16 = V(); vKV = V(); vg = V(); vWo = V(4); vRw = V(); vRr = V(); vfl = V(); vfa = V()
    vWr = V(6)
    tp = V(2, 2); sent = V(4, 4)
    big = V(136, 4)
    Q = [big[8*j:8*j+8] for j in range(4)]
    Sb = [big[32:48], big[48:64]]
    P = big[64:72]
    O = [big[72+16*j:88+16*j] for j in range(4)]
    stg = V(64, 4)
    pq = V(8, 4); obuf = V(8, 4)
    KVr = [AG(16, 4) for _ in range(NB)]
    oBf = AG(64, 4); woA = AG(128, 4) if NB <= 4 else None
    A(kernel_head(name))
    ST = Stamps(A, stamps, 1)
    STc = lambda n: None if fine else ST(n)
    A("s_cmp_ge_u32 s2, 256")
    A(f"s_cbranch_scc1 L_{name}_end")
    ST("rt0", True); ST("start")
    A("s_load_dwordx2 s[4:5], s[0:1], 72")
    A("s_load_dwordx2 s[6:7], s[0:1], 56")
    A("s_load_dwordx2 s[8:9], s[0:1], 16")
    A("s_load_dwordx2 s[10:11], s[0:1], 40")
    A(f"v_lshrrev_b32 {t0}, 6, v0")
    A(f"v_and_b32 {lane}, 63, v0")
    A(f"v_readfirstlane_b32 s{W_}, {t0}")
    A(f"s_and_b32 s{H}, s2, 7"); A(f"s_lshl_b32 s{H}, s{H}, 1"); A(f"s_bfe_u32 s{T0}, s2, 0x10003"); A(f"s_add_u32 s{H}, s{H}, s{T0}")
    A(f"s_lshr_b32 s{QB}, s2, 4")
    A(f"v_lshlrev_b32 {vL16}, 4, {lane}")
    A(f"s_lshl_b32 s{T0}, s{H}, 2"); A(f"s_add_u32 s{T0}, s{T0}, s{W_}"); A(f"s_lshl_b32 s{T0}, s{T0}, 16")
    A(f"v_add_u32 {vKV}, s{T0}, {vL16}")
    A(f"s_and_b32 s{KO}, s{QB}, {rotm}"); A(f"s_lshl_b32 s{KO}, s{KO}, {12 + 4 - rotm.bit_length()}")
    A(f"s_lshl_b32 s{T0}, s{QB}, 2"); A(f"s_add_u32 s{T0}, s{T0}, s{W_}")
    A(f"s_lshl_b32 s{OSL}, s{T0}, 4"); A(f"s_add_u32 s{OSL}, s{OSL}, s{H}"); A(f"s_lshl_b32 s{OSL}, s{OSL}, 11")
    A(f"s_lshl_b32 s{T1}, s{H}, 6"); A(f"s_add_u32 s{T1}, s{T1}, s{T0}"); A(f"s_lshl_b32 s{T1}, s{T1}, 11"); A(f"s_add_u32 s55, s{T1}, {hx(WS_QA)}")
    A(f"s_add_u32 s{KOS[1]}, s{KO}, 4096"); A(f"s_and_b32 s{KOS[1]}, s{KOS[1]}, 0xffff")
    A("s_waitcnt lgkmcnt(0)")
    srd(A, sW, "s4", "s5", WS_USED)
    vm = VmQ(); issued = {}
    def emit(item):
        for x in item:
            if x.startswith("VM:"): vm.issue(x[3:]); issued[x[3:]] = issued.get(x[3:], 0) + 1
            elif x.startswith("WAIT:"):
                n = vm.wait_for(x[5:])
                if n is not None: A(f"s_waitcnt vmcnt({n})")
            else: A(x)
    def ldk(n): return [[f"buffer_load_dwordx4 {KVr[n%NB][4*st:4*st+4]}, {vKV}, s[{sW}:{sW+3}], s{KOS[n]} offen offset:{st*1024}", f"VM:K{n}"] for st in range(2)]
    def ldv(n): return [[f"buffer_load_dwordx4 {KVr[n%NB][8+4*st:12+4*st]}, {vKV}, s[{sW}:{sW+3}], s{KOS[n]} offen offset:{2048+st*1024}", f"VM:V{n}"] for st in range(2)]
    ldq = [[f"buffer_load_dwordx4 {Q[3][4*st:4*st+4]}, {vL16}, s[{sW}:{sW+3}], s55 offen offset:{st*1024}", "VM:Q"] for st in range(2)]
    for it in ldq + ldk(0) + ldv(0) + ldk(1) + ldv(1): emit(it)
    srd(A, sO, "s6", "s7", OUT_BYTES); srd(A, sA, "s8", "s9", WO_BYTES); srd(A, sB, "s10", "s11", WO_BYTES)
    for n in range(2, 16):
        A(f"s_add_u32 s{KOS[n]}, s{KO}, {4096*n}"); A(f"s_and_b32 s{KOS[n]}, s{KOS[n]}, 0xffff")
    A(f"s_lshr_b32 s{IDX}, s2, 3")
    A(f"s_mul_i32 s{T0}, s{IDX}, 37"); A(f"s_lshr_b32 s{T0}, s{T0}, 8")
    A(f"s_mul_i32 s{CG}, s{T0}, 7"); A(f"s_sub_u32 s{CG}, s{IDX}, s{CG}")
    A(f"s_min_u32 s{T0}, s{T0}, 3")
    A(f"s_and_b32 s{T1}, s2, 7"); A(f"s_lshl_b32 s{T1}, s{T1}, 2"); A(f"s_add_u32 s{T0}, s{T0}, s{T1}")
    A(f"s_lshl_b32 s{T0}, s{T0}, 1"); A(f"s_and_b32 s{T1}, s{W_}, 1"); A(f"s_add_u32 s{RT2}, s{T0}, s{T1}")
    A(f"s_lshr_b32 s{KH}, s{W_}, 1")
    A(f"v_lshrrev_b32 {t0}, 3, {lane}"); A(f"v_mul_u32_u24 {t0}, {XROW}, {t0}")
    A(f"v_lshrrev_b32 {t1}, 2, {lane}"); A(f"v_and_b32 {t1}, 4, {t1}"); A(f"v_and_b32 {t2}, 7, {lane}"); A(f"v_xor_b32 {t1}, {t1}, {t2}")
    A(f"v_lshl_add_u32 {t0}, {t1}, 4, {t0}"); A(f"s_lshl_b32 s{T0}, s{CG}, 7"); A(f"v_add_u32 {vWo[0]}, s{T0}, {t0}")
    for q in range(1, 4): A(f"v_add_u32 {vWo[q]}, {q*(8*XROW-1024)}, {vWo[0]}")
    A(f"s_mul_i32 s{WOS[0]}, s{W_}, {112*XROW}")
    for g in range(1, 4): A(f"s_add_u32 s{WOS[g]}, s{WOS[0]}, {g*32*XROW}")
    A(f"s_mul_i32 s{WL}, s{W_}, 14336")
    A(f"s_lshl_b32 s{T1}, s{H}, 2"); A(f"s_add_u32 s{T1}, s{T1}, s{W_}"); A(f"s_lshl_b32 s{T1}, s{T1}, 14"); A(f"s_add_u32 s{KVPB}, s{T1}, {hx(WS_KVP)}")
    A(f"s_add_u32 s{PQB}, s55, {WS_PQ - WS_QA}")
    A(f"s_lshr_b32 s{T1}, s{OSL}, 15"); A(f"s_lshl_b32 s{T1}, s{T1}, 7"); A(f"s_add_u32 s{GB}, s{T1}, {hx(WS_G)}")
    A(f"s_add_u32 s{OAS}, s{OSL}, {hx(WS_OA)}"); A(f"s_add_u32 s{OBS}, s{OSL}, {hx(WS_OB)}")
    A(f"s_lshr_b32 s{T1}, s{OSL}, 9"); A(f"s_add_u32 s{FLO}, s{T1}, {hx(WS_FL)}")
    A(f"s_lshl_b32 s{T1}, s{RT2}, 6"); A(f"s_add_u32 s{FLT}, s{T1}, {hx(WS_FL)}")
    A(f"s_lshl_b32 s{T1}, s{RT2}, 1"); A(f"s_add_u32 s{T1}, s{T1}, s{KH}"); A(f"s_lshl_b32 s{T1}, s{T1}, 14"); A(f"s_add_u32 s{OBT}, s{T1}, {hx(WS_OB)}")
    A(f"s_mov_b32 s{TW}, s{OBT}")
    for j in range(3):
        A(f"s_add_u32 s{T1}, s{W_}, {j+1}"); A(f"s_and_b32 s{T1}, s{T1}, 3"); A(f"s_mul_i32 s{RED[j]}, s{T1}, 12288")
    A(f"s_lshl_b32 s{T0}, s{KH}, 10"); A(f"s_and_b32 s{T1}, s{W_}, 1"); A(f"s_lshl_b32 s{T1}, s{T1}, 3"); A(f"s_add_u32 s{T0}, s{T0}, s{T1}"); A(f"s_add_u32 s{KVXA}, s{T0}, {L_KVX}")
    A(f"v_and_b32 {t1}, 3, {lane}"); A(f"v_lshlrev_b32 {t1}, 3, {t1}")
    A(f"v_and_b32 {t0}, 16, {lane}"); A(f"v_lshl_add_u32 {t1}, {t0}, 1, {t1}")
    A(f"v_and_b32 {t0}, 8, {lane}"); A(f"v_lshl_add_u32 {t1}, {t0}, 3, {t1}")
    A(f"s_lshl_b32 s{T0}, s{KH}, 6"); A(f"v_xor_b32 {t1}, s{T0}, {t1}")
    A(f"v_bfe_u32 {t0}, {lane}, 2, 2"); A(f"v_lshl_add_u32 {t1}, {t0}, 7, {t1}")
    A(f"s_mul_i32 s{T0}, s{KH}, 28672"); A(f"s_add_u32 s{T0}, s{T0}, {L_WO + WO_IMG}")
    A(f"v_add_u32 {vWr[4]}, s{T0}, {t1}"); A(f"v_xor_b32 {vWr[5]}, 64, {vWr[4]}")
    A(f"v_lshrrev_b32 {t0}, 5, {lane}"); A(f"v_lshl_add_u32 {vWr[2]}, {t0}, 9, {vWr[4]}"); A(f"v_xor_b32 {vWr[3]}, 64, {vWr[2]}")
    A(f"v_subrev_u32 {vWr[0]}, {WO_IMG}, {vWr[2]}"); A(f"v_subrev_u32 {vWr[1]}, {WO_IMG}, {vWr[3]}")
    A(f"s_mul_i32 s{T1}, s{W_}, 12288"); A(f"v_add_u32 {vRr}, s{T1}, {vL16}")
    for i in (6, 7): A(f"v_mov_b32 {obuf[i]}, 0")
    for i in range(4): A(f"v_mov_b32 {sent[i]}, -1")
    A(f"v_and_b32 {vfl}, 31, {lane}"); A(f"v_lshlrev_b32 {vfl}, 2, {vfl}")
    A(f"v_and_b32 {vfa}, 7, {lane}"); A(f"s_lshl_b32 s{T0}, s{KH}, 3"); A(f"v_add_lshl_u32 {vfa}, {vfa}, s{T0}, 2")
    A(f"s_lshl_b32 s{T0}, s{W_}, 11"); A(f"v_add_u32 {vRw}, s{T0}, {vL16}")
    for j in range(3):
        A(f"s_add_u32 s{T0}, s{W_}, {j+1}"); A(f"s_and_b32 s{T0}, s{T0}, 3"); A(f"s_lshl_b32 s{T0}, s{T0}, 11")
        A(f"v_add_u32 {[t0, t1, t2][j]}, s{T0}, {vL16}")

    order = [(0, j) for j in (3, 0, 1, 2)] + [(n, j) for n in range(1, 16 - QM) for j in range(4)] + [(n, j) for j in range(4) for n in range(16 - QM, 16)]
    firstO = set()
    def qk(t, st):
        n, j = order[t]
        return (f"{MFMA} {Sb[t&1]}, {KVr[n%NB][4*st:4*st+4]}, {Q[j][4*st:4*st+4]}, {'0' if st == 0 else Sb[t&1]}", [f"K{n}"])
    def pv(t, st):
        n, j = order[t]
        c = O[j] if j in firstO else "0"
        firstO.add(j)
        return (f"{MFMA} {O[j]}, {KVr[n%NB][8+4*st:12+4*st]}, {P[4*st:4*st+4]}, {c}", [f"V{n}"])
    ex = lambda t, i: f"v_exp_f32 {Sb[t&1][i]}, {Sb[t&1][i]}"
    cv = lambda t, i: f"v_cvt_pk_bf16_f32 {P[i]}, {Sb[t&1][2*i]}, {Sb[t&1][2*i+1]}"
    slots = []
    for t in range(64):
        slots.append((qk(t+1, 0) if t < 63 else None, [ex(t, i) for i in range(0, 4)]))
        slots.append((qk(t+1, 1) if t < 63 else None, [cv(t, 0), cv(t, 1)] + [ex(t, i) for i in range(4, 8)]))
        slots.append((pv(t-1, 1) if t > 0 else None, [cv(t, 2), cv(t, 3)] + [ex(t, i) for i in range(8, 12)]))
        slots.append((pv(t, 0), [cv(t, 4), cv(t, 5)] + [ex(t, i) for i in range(12, 16)] + [cv(t, 6), cv(t, 7)]))
    hi, lo, fix, mid = [], [], {}, {}
    def at(slot, items): fix.setdefault(slot, []).extend(items)
    lastK = {n: max(4*(t-1)+1 for t in range(64) if order[t][0] == n) for n in range(16)}
    lastV = {n: max(4*(t+1)+2 for t in range(64) if order[t][0] == n) for n in range(16)}
    for n in range(2, 16):
        p = n - NB
        eK = max(lastK[p] if p >= 0 else 0, (n - NB + 1) * 16); eV = max(lastV[p] if p >= 0 else 0, eK)
        hi.append((eK, ldk(n))); hi.append((eV, ldv(n)))
    bl = []
    for b in range(16):
        if b % 4 == 0 and b: bl.append([f"s_add_u32 s{KVPB}, s{KVPB}, 4096"])
        bl.append([f"buffer_load_dwordx4 {stg[4*b:4*b+4]}, {vL16}, s[{sW}:{sW+3}], s{KVPB} offen offset:{(b%4)*1024}", "VM:kvp"])
    for st in range(2): bl.append([f"buffer_load_dwordx4 {pq[4*st:4*st+4]}, {vL16}, s[{sW}:{sW+3}], s{PQB} offen offset:{st*1024}", "VM:pq"])
    bl += [[f"buffer_load_dword {vg}, {vfl}, s[{sW}:{sW+3}], s{GB} offen", "VM:pq"]]
    bl += [[f"buffer_store_dwordx4 {sent}, {vL16}, s[{sW}:{sW+3}], s{OAS} offen offset:{st*1024} sc1", "VM:ost"] for st in range(2)]
    lo.append((4, bl))
    wl = []
    for br, srd_ in ((0, sB), (1, sA)):
        for q in range(14):
            if q % 4 == 0: wl.append([f"s_add_u32 m0, s{WL}, {L_WO + br*WO_IMG + q*1024}"])
            wl.append([f"buffer_load_dwordx4 {vWo[q%4]}, s[{srd_}:{srd_+3}], s{WOS[q//4]} offen offset:{(q%4)*1024} lds", "VM:wo"])
    lo.append((5, wl))
    s0 = bb * 4
    adds = [f"v_pk_add_f32 {stg[i:i+2]}, {stg[i:i+2]}, {stg[lvl+i:lvl+i+2]}" for lvl in (32, 16, 8, 4) for i in range(0, lvl, 2)]
    at(s0, ["CHK:kvp:16", "WAIT:kvp"])
    for k in range(8): at(s0 + k, adds[4*k:4*k+4])
    at(s0 + 8, [f"v_add_u32 {t0}, s{KVXA}, {vL16}", f"v_cvt_pk_bf16_f32 {tp[0]}, {stg[0]}, {stg[1]}", f"v_cvt_pk_bf16_f32 {tp[1]}, {stg[2]}, {stg[3]}"])
    at(s0 + 9, [f"ds_write_b64 {t0}, {tp}"])
    at(s0 + 11, ["s_waitcnt lgkmcnt(0)", "s_barrier"])
    at(s0 + 12, [f"ds_read_b128 {stg[4:8]}, {vL16} offset:{L_KVX}", f"ds_read_b128 {stg[8:12]}, {vL16} offset:{L_KVX+1024}"])
    num = stg[16:32]
    at(s0 + 15, ["CHK:pq:3", "WAIT:pq", "s_waitcnt lgkmcnt(0)"])
    mid[s0 + 15] = f"{MFMA} {num}, {stg[4:8]}, {pq[0:4]}, 0"
    mid[s0 + 19] = f"{MFMA} {num}, {stg[8:12]}, {pq[4:8]}, {num}"
    at(s0 + 17, ["s_barrier"])
    at(s0 + 22, [f"v_mov_b32 {t1}, {num[12]}", f"v_sub_f32 {t3}, 1.0, {vg}"])
    at(s0 + 23, [f"v_permlane32_swap_b32 {num[12]}, {t1}", f"v_add_f32 {t1}, {hx(f32bits(1e-6))}, {t1}", f"v_rcp_f32 {t1}, {t1}"])
    at(s0 + 24, [f"v_mul_f32 {t1}, {t1}, {t3}"])
    for k in range(4): at(s0 + 24 + k, [f"v_mul_f32 {num[i]}, {t1}, {num[i]}" for i in range(4*k, 4*k+4)])
    cvo = lambda acc, i: f"v_cvt_pk_bf16_f32 {obuf[i]}, {acc[2*i]}, {acc[2*i+1]}"
    at(s0 + 28, [cvo(num, i) for i in range(4)])
    at(s0 + 29, [f"buffer_store_dwordx4 {obuf[0:4]}, {vL16}, s[{sW}:{sW+3}], s{OBS} offen sc1", "VM:ost", cvo(num, 4), cvo(num, 5),
                 "s_mov_b64 exec, 0xffffffff", cvo(num, 6), cvo(num, 7), "s_mov_b64 exec, -1"])
    at(s0 + 30, [f"buffer_store_dwordx4 {obuf[4:8]}, {vL16}, s[{sW}:{sW+3}], s{OBS} offen offset:1024 sc1", "VM:ost"])
    at(s0 + 30 + 4*flag_lag, ["CHK:ost:4", "WAIT:ost", f"v_mov_b32 {t0}, 0", f"v_mov_b32 {t1}, 1", "s_mov_b64 exec, 1",
                 f"buffer_store_dword {t1}, {t0}, s[{sW}:{sW+3}], s{FLO} offen sc1", "VM:fl", "s_mov_b64 exec, -1"])
    lo.append(((poll_at - 3) * 4, [[f"buffer_load_dword {vfl}, {vfa}, s[{sW}:{sW+3}], s{FLT} offen sc1", "VM:flld"]]))
    ol = []
    for k in range(16):
        if k % 4 == 0 and k: ol.append([f"s_add_u32 s{TW}, s{TW}, 4096"])
        ol.append([f"buffer_load_dwordx4 {oBf[4*k:4*k+4]}, {vL16}, s[{sW}:{sW+3}], s{TW} offen offset:{(k%4)*1024} sc1", "VM:oB"])
    lo.append((poll_at * 4 + 1, ol))
    for j in range(3):
        tl = max(t for t in range(64) if order[t][1] == j)
        at((tl + 1) * 4 + 3, [f"v_add_u32 {vRw}, s{RED[j]}, {vL16}"])
        wr = [[f"ds_write_b128 {vRw}, {O[j][4*q:4*q+4]} offset:{j*4096 + q*1024}"] for q in range(4)]
        if j == 2:
            wr += [["s_waitcnt lgkmcnt(0)", "s_barrier"]]
            rd = [f"ds_read_b128 {stg[16*jj+4*q:16*jj+4*q+4]}, {vRr} offset:{jj*4096 + q*1024}" for jj in range(3) for q in range(4)]
            wr += [rd[i:i+3] for i in range(0, 12, 3)]
        hi.append(((tl + 1) * 4 + 4, wr))
    hi.sort(key=lambda e: e[0]); lo.sort(key=lambda e: e[0])
    ph, pl = deque(), deque()

    A(f"s_waitcnt vmcnt({vm.wait_for('Q')})")
    A(f"ds_write_b128 {vRw}, {Q[3][0:4]}"); A(f"ds_write_b128 {vRw}, {Q[3][4:8]} offset:1024")
    A(f"s_waitcnt vmcnt({vm.wait_for('K0')})"); A(qk(0, 0)[0]); A(qk(0, 1)[0])
    ST("first")
    A("s_waitcnt lgkmcnt(0)")
    A("s_barrier")
    for j in range(3):
        for st in range(2): A(f"ds_read_b128 {Q[j][4*st:4*st+4]}, {[t0, t1, t2][j]} offset:{st*1024}")
    A("s_nop 1")
    A("s_waitcnt lgkmcnt(4)")
    at(1, ["s_waitcnt lgkmcnt(0)"])
    lastlo = -99
    for i, (mf, valu) in enumerate(slots):
        if fine and i % 16 == 0 and (i // 16) in fine: ST(f"t{i//4}")
        if i == poll_at * 4:
            assert issued.get("flld") == 1 and issued.get("wo") == 28 and not pl, (issued, pl)
            emit(["WAIT:flld"])
            A(f"s_mov_b32 s{CNT}, 0")
            A.label(f"L_{name}_pollB")
            A(f"v_cmp_ne_u32 vcc, 1, {vfl}")
            A(f"s_cbranch_vccz L_{name}_pollB_done")
            A(f"buffer_load_dword {vfl}, {vfa}, s[{sW}:{sW+3}], s{FLT} offen sc1")
            A(f"s_add_u32 s{CNT}, s{CNT}, 1")
            A(f"s_cmp_lt_u32 s{CNT}, {SPIN}")
            A("s_waitcnt vmcnt(0)")
            A(f"s_cbranch_scc1 L_{name}_pollB")
            A.label(f"L_{name}_pollB_done")
        while hi and hi[0][0] <= i: ph.extend(hi.pop(0)[1])
        while lo and lo[0][0] <= i: pl.extend(lo.pop(0)[1])
        if mf is not None:
            for tg in mf[1]: assert issued.get(tg) == 2, (i, tg)
            n = vm.wait_for(mf[1])
            if n is not None: A(f"s_waitcnt vmcnt({n})")
            A(mf[0])
        fx = fix.pop(i, [])
        nxt = slots[i+1][0] if i + 1 < len(slots) else None
        if nxt is not None and any(tg in vm.q for tg in nxt[1]) and all(issued.get(tg) == 2 for tg in nxt[1]):
            A(f"s_waitcnt vmcnt({vm.wait_for(nxt[1])})")
        elif fx and not fx[0].startswith("v_"): pass
        elif ph: emit(ph.popleft())
        elif pl:
            isld = any(x.startswith("VM:") for x in pl[0])
            if not isld or i - lastlo >= pace:
                emit(pl.popleft())
                if isld: lastlo = i
        for x in fx:
            if x.startswith("CHK:"):
                _, tg, c = x.split(":"); assert issued.get(tg) == int(c), (i, x, issued)
            else: emit([x])
        if i in mid:
            for x in valu[:4]: A(x)
            A(mid.pop(i))
            for x in valu[4:]: A(x)
        else:
            for x in valu: A(x)
    assert not hi and not lo and not fix and not mid
    A("s_nop 0")
    while ph: emit(ph.popleft())
    A(pv(63, 1)[0])
    while pl: emit(pl.popleft())
    ST("loop")

    def norm_store(acc, gfac, base):
        for i in range(16): A(f"v_mul_f32 {acc[i]}, {gfac}, {acc[i]}")
        for i in range(4): A(cvo(acc, i))
        A(f"buffer_store_dwordx4 {obuf[0:4]}, {vL16}, s[{sW}:{sW+3}], s{base} offen sc1")
        for i in (4, 5): A(cvo(acc, i))
        A("s_mov_b64 exec, 0xffffffff")
        for i in (6, 7): A(cvo(acc, i))
        A("s_mov_b64 exec, -1")
        A(f"buffer_store_dwordx4 {obuf[4:8]}, {vL16}, s[{sW}:{sW+3}], s{base} offen offset:1024 sc1")
    def reduce_norm(check):
        if not check:
            for j in range(3):
                for q in range(4): A(f"ds_read_b128 {stg[16*j+4*q:16*j+4*q+4]}, {vRr} offset:{j*4096 + q*1024}")
        A("s_waitcnt lgkmcnt(4)")
        for i in range(0, 16, 2): A(f"v_pk_add_f32 {stg[i:i+2]}, {stg[i:i+2]}, {stg[16+i:18+i]}")
        A("s_waitcnt lgkmcnt(0)")
        for i in range(0, 16, 2): A(f"v_pk_add_f32 {stg[i:i+2]}, {stg[i:i+2]}, {stg[32+i:34+i]}")
        for i in range(0, 16, 2): A(f"v_pk_add_f32 {O[3][i:i+2]}, {O[3][i:i+2]}, {stg[i:i+2]}")
        A(f"v_mov_b32 {t1}, {O[3][12]}")
        if check:
            A(f"v_pk_mul_f32 {tp}, {O[3][0:2]}, 0")
            for i in range(2, 16, 2): A(f"v_pk_fma_f32 {tp}, {O[3][i:i+2]}, 0, {tp}")
        else: A("s_nop 1")
        A(f"v_permlane32_swap_b32 {O[3][12]}, {t1}")
        if check:
            A(f"v_add_f32 {t2}, {tp[0]}, {tp[1]}")
            A(f"v_add_f32 {t2}, {t2}, {t1}")
            lo_, hi_ = (2.0**-60, 2.0**60) if not force_fallback else (2.0**30, 2.0**60)
            A(f"v_cmp_le_f32 vcc, {hx(f32bits(lo_))}, {t2}")
            A(f"s_mov_b32 s{T1}, {hx(f32bits(hi_))}")
            A(f"v_cmp_ge_f32 s[50:51], s{T1}, {t2}")
        A(f"v_rcp_f32 {t1}, {t1}")
        if check:
            A("s_and_b64 vcc, vcc, s[50:51]")
            A("s_cmp_eq_u64 vcc, -1")
            A(f"s_cselect_b32 s{OK}, 1, 0")
        else: A("s_nop 0")
        A(f"v_mul_f32 {t1}, {t1}, {vg}")
    reduce_norm(True)
    A(f"s_cbranch_scc0 L_{name}_vote")
    norm_store(O[3], t1, OAS)
    A.label(f"L_{name}_vote")
    STc("pub")
    A(f"v_mov_b32 {t1}, s{OK}"); A(f"v_and_b32 {t2}, 3, {lane}"); A(f"v_mul_u32_u24 {t2}, 12288, {t2}")
    A("s_mov_b64 exec, 1")
    A(f"ds_write_b32 {vRr}, {t1}")
    A("s_mov_b64 exec, -1")
    A("s_waitcnt vmcnt(2) lgkmcnt(0)")
    A("s_barrier")
    A(f"ds_read_b32 {t0}, {t2}")
    A("s_waitcnt lgkmcnt(0)")
    A(f"v_cmp_eq_u32 vcc, 0, {t0}")
    A(f"s_cbranch_vccnz L_{name}_fb")
    A.label(f"L_{name}_tail")
    A(f"s_cmp_ge_u32 s{IDX}, 28")
    A(f"s_cbranch_scc1 L_{name}_exit")
    STc("tail")
    def wo_reads(dst, br, k, c):
        hl, st = k >> 1, k & 1
        o = (28*hl + 16*st) * 128
        a2 = vWr[4 + c] if (br == 1 and k == 15) else vWr[2*br + c]
        return [f"ds_read_b64_tr_b16 {dst[0:2]}, {vWr[2*br + c]} offset:{o}", f"ds_read_b64_tr_b16 {dst[2:4]}, {a2} offset:{o+1024}"]
    accB = [stg[0:16], stg[16:32]]; accA = [big[64:80], big[80:96]]
    wt = [stg[32+4*i:36+4*i] for i in range(4)]
    seq = [(k, c) for k in range(16) for c in range(2)]
    for u in range(3):
        for x in wo_reads(wt[u], 0, *seq[u]): A(x)
    wA = woA if woA is not None else None
    for u, (k, c) in enumerate(seq):
        if u + 3 < 32:
            for x in wo_reads(wt[(u+3) % 4], 0, *seq[u+3]): A(x)
        A(f"s_waitcnt lgkmcnt({2*min(31-u, 3)})")
        A(f"{MFMA} {accB[c]}, {wt[u % 4]}, {oBf[4*k:4*k+4]}, {'0' if k == 0 else accB[c]}")
    A(f"s_add_u32 s{TW}, s{OBT}, {hx(WS_OA - WS_OB)}")
    A(f"v_and_b32 {t0}, 7, {lane}"); A(f"v_lshlrev_b32 {t0}, 11, {t0}"); A(f"v_add_u32 {t0}, 1024, {t0}")
    A(f"s_mov_b32 s{CNT}, 0")
    if not direct:
        A(f"buffer_load_dword {vfl}, {t0}, s[{sW}:{sW+3}], s{TW} offen sc1")
    for u, (k, c) in enumerate(seq):
        for x in wo_reads(woA[4*u:4*u+4], 1, k, c): A(x)
    STc("Bdone")
    if not direct:
        A.label(f"L_{name}_pollA")
        A("s_waitcnt vmcnt(0)")
        A(f"v_cmp_eq_u32 vcc, -1, {vfl}")
        A(f"s_cbranch_vccz L_{name}_loadA")
        A(f"buffer_load_dword {vfl}, {t0}, s[{sW}:{sW+3}], s{TW} offen sc1")
        A(f"s_add_u32 s{CNT}, s{CNT}, 1")
        A(f"s_cmp_lt_u32 s{CNT}, {SPIN}")
        A(f"s_cbranch_scc1 L_{name}_pollA")
    A.label(f"L_{name}_loadA")
    STc("seen")
    A(f"s_mov_b32 s{T0}, s{TW}")
    oAf = big[0:64]
    for k in range(16):
        if k % 4 == 0 and k: A(f"s_add_u32 s{T0}, s{T0}, 4096")
        A(f"buffer_load_dwordx4 {oAf[4*k:4*k+4]}, {vL16}, s[{sW}:{sW+3}], s{T0} offen offset:{(k%4)*1024} sc1")
    A(f"v_mov_b32 {t1}, 0")
    A("s_waitcnt lgkmcnt(0)")
    for u, (k, c) in enumerate(seq):
        if c == 0: A(f"s_waitcnt vmcnt({15-k})")
        A(f"{MFMA} {accA[c]}, {woA[4*u:4*u+4]}, {oAf[4*k:4*k+4]}, {accB[c] if k == 0 else accA[c]}")
        A(f"v_max3_u32 {t1}, {t1}, {oAf[4*k+2*c]}, {oAf[4*k+2*c+1]}")
    A(f"v_cmp_eq_u32 vcc, -1, {t1}")
    A(f"s_add_u32 s{CNT}, s{CNT}, 1")
    A(f"s_cmp_gt_u32 s{CNT}, {SPIN}")
    A(f"s_cbranch_scc1 L_{name}_store")
    A(f"s_cbranch_vccnz L_{name}_loadA")
    A.label(f"L_{name}_store")
    STc("Adone")
    A(f"s_xor_b32 s{T0}, s{W_}, 2"); A(f"s_mul_i32 s{T0}, s{T0}, 12288"); A(f"v_add_u32 {t2}, s{T0}, {vL16}")
    A(f"v_and_b32 {t0}, 31, {lane}"); A(f"v_mul_u32_u24 {t0}, {XROW}, {t0}")
    A(f"v_lshrrev_b32 {t1}, 5, {lane}"); A(f"v_lshl_add_u32 {t0}, {t1}, 4, {t0}")
    for q in range(4): A(f"ds_write_b128 {vRr}, {accA[1][4*q:4*q+4]} offset:{4096 + q*1024}")
    A(f"s_mul_i32 s{T0}, s{RT2}, {32*XROW}"); A(f"s_lshl_b32 s{T1}, s{CG}, 1"); A(f"s_add_u32 s{T1}, s{T1}, s{KH}"); A(f"s_lshl_b32 s{T1}, s{T1}, 6")
    A(f"s_add_u32 s{T0}, s{T0}, s{T1}")
    A("s_waitcnt lgkmcnt(0)")
    A("s_barrier")
    for q in range(4): A(f"ds_read_b128 {stg[4*q:4*q+4]}, {t2} offset:{4096 + q*1024}")
    for q in range(4):
        A(f"s_waitcnt lgkmcnt({3-q})")
        for i in (4*q, 4*q+2): A(f"v_pk_add_f32 {accA[0][i:i+2]}, {accA[0][i:i+2]}, {stg[i:i+2]}")
        for i in (2*q, 2*q+1): A(cvo(accA[0], i))
        if q & 1:
            p = 2*q - 2
            A("s_nop 1")
            A(f"v_permlane32_swap_b32 {obuf[p]}, {obuf[p+2]}")
            A(f"v_permlane32_swap_b32 {obuf[p+1]}, {obuf[p+3]}")
            A(f"buffer_store_dwordx4 {obuf[p:p+4]}, {t0}, s[{sO}:{sO+3}], s{T0} offen offset:{8*p}")
    A.label(f"L_{name}_exit")
    if stamps:
        A("s_waitcnt vmcnt(0)"); ST("end"); ST("rt1", True); ST.flush(sW, W_, t0, t1, T0)
        gen_k2.names = ST.names
    A.label(f"L_{name}_end")
    A("s_endpgm")

    A.label(f"L_{name}_fb")
    mx = pq[4:8]
    kf, vf = KVr[0][0:8], KVr[0][8:16]
    for j in range(4): A(f"v_mov_b32 {mx[j]}, 0xff800000")
    def fb_loop(lbl, body, loadv):
        A(f"s_mov_b32 s{KO}, 0")
        A.label(lbl)
        for st in range(2): A(f"buffer_load_dwordx4 {kf[4*st:4*st+4]}, {vKV}, s[{sW}:{sW+3}], s{KO} offen offset:{st*1024}")
        if loadv:
            for st in range(2): A(f"buffer_load_dwordx4 {vf[4*st:4*st+4]}, {vKV}, s[{sW}:{sW+3}], s{KO} offen offset:{2048+st*1024}")
        A("s_waitcnt vmcnt(0)")
        for j in range(4):
            A(f"{MFMA} {Sb[0]}, {kf[0:4]}, {Q[j][0:4]}, 0")
            A(f"{MFMA} {Sb[0]}, {kf[4:8]}, {Q[j][4:8]}, {Sb[0]}")
            A("s_nop 11")
            body(j)
        A(f"s_add_u32 s{KO}, s{KO}, 4096")
        A(f"s_cmp_lt_u32 s{KO}, 0x10000")
        A(f"s_cbranch_scc1 {lbl}")
    def body_max(j):
        for i in range(0, 16, 2): A(f"v_max3_f32 {mx[j]}, {mx[j]}, {Sb[0][i]}, {Sb[0][i+1]}")
    fb_loop(f"L_{name}_fbmax", body_max, False)
    for j in range(4):
        A(f"s_add_u32 s{T0}, s{W_}, {j+1}"); A(f"s_and_b32 s{T0}, s{T0}, 3"); A(f"s_lshl_b32 s{T0}, s{T0}, 2"); A(f"s_add_u32 s{T0}, s{T0}, s{W_}"); A(f"s_lshl_b32 s{T0}, s{T0}, 8")
        A(f"v_lshl_add_u32 {t0}, {lane}, 2, s{T0}")
        A(f"ds_write_b32 {t0}, {mx[j]} offset:{L_MAX}")
    A("s_waitcnt lgkmcnt(0)")
    A("s_barrier")
    A(f"v_and_b32 {t2}, 31, {lane}")
    for j in range(4):
        A(f"s_add_u32 s{T0}, s{W_}, {j+1}"); A(f"s_and_b32 s{T0}, s{T0}, 3"); A(f"s_lshl_b32 s{T0}, s{T0}, 10")
        A(f"v_lshl_add_u32 {t0}, {t2}, 2, s{T0}")
        for i in range(8): A(f"ds_read_b32 {Sb[0][i]}, {t0} offset:{L_MAX + i*128}")
        A("s_waitcnt lgkmcnt(0)")
        A(f"v_max3_f32 {t1}, {Sb[0][0]}, {Sb[0][1]}, {Sb[0][2]}"); A(f"v_max3_f32 {t1}, {t1}, {Sb[0][3]}, {Sb[0][4]}")
        A(f"v_max3_f32 {t1}, {t1}, {Sb[0][5]}, {Sb[0][6]}"); A(f"v_max_f32 {t1}, {t1}, {Sb[0][7]}")
        A(f"v_sub_f32 {t1}, 0, {t1}")
        A(f"v_cvt_pk_bf16_f32 {t3}, {t1}, {t1}"); A(f"v_and_b32 {tp[0]}, 0xffff0000, {t3}"); A(f"v_sub_f32 {t1}, {t1}, {tp[0]}")
        A(f"v_cvt_pk_bf16_f32 {t3}, {t1}, {t1}"); A(f"v_and_b32 {tp[1]}, 0xffff0000, {t3}"); A(f"v_sub_f32 {t1}, {t1}, {tp[1]}")
        A("s_mov_b32 exec_lo, 0")
        A(f"v_cvt_pk_bf16_f32 {Q[j][6]}, {tp[0]}, {tp[1]}")
        A(f"v_cvt_pk_bf16_f32 {Q[j][7]}, {t1}, 0")
        A("s_mov_b32 exec_lo, -1")
    for j in range(4):
        for i in range(16): A(f"v_mov_b32 {O[j][i]}, 0")
    A("s_barrier")
    def body_pv(j):
        for i in range(16): A(f"v_exp_f32 {Sb[0][i]}, {Sb[0][i]}")
        A("s_nop 0")
        for i in range(8): A(f"v_cvt_pk_bf16_f32 {P[i]}, {Sb[0][2*i]}, {Sb[0][2*i+1]}")
        A("s_nop 1")
        A(f"{MFMA} {O[j]}, {vf[0:4]}, {P[0:4]}, {O[j]}")
        A(f"{MFMA} {O[j]}, {vf[4:8]}, {P[4:8]}, {O[j]}")
    fb_loop(f"L_{name}_fbpv", body_pv, True)
    A("s_nop 11")
    for j in range(3):
        A(f"v_add_u32 {vRw}, s{RED[j]}, {vL16}")
        for q in range(4): A(f"ds_write_b128 {vRw}, {O[j][4*q:4*q+4]} offset:{j*4096 + q*1024}")
    A("s_waitcnt lgkmcnt(0)")
    A("s_barrier")
    reduce_norm(False)
    A(f"s_cmp_eq_u32 s{OK}, 1")
    A(f"s_cbranch_scc1 L_{name}_fbdone")
    norm_store(O[3], t1, OAS)
    A.label(f"L_{name}_fbdone")
    A(f"s_branch L_{name}_tail")
    return A.text(), kernel_desc(name, 256, 256, 102 if stamps else 64), (V.high, AG.high)

if __name__ == "__main__":
    t, d, n = gen_k2()
    print("k2b", n, "hazards", check_hazards(t), "lines", t.count("\n"))
```

```python
from common import *
from collections import deque

L_RED, L_WO, WO_IMG = 0, 49152, 57344
L_KVX, L_MAX = 8192, 8192
LDS = 163840
SLOT = 32768
L_PA, L_PB = 2 * SLOT, 2 * SLOT + 28672 + 1024
SPIN = 0x40000
ROLES = [2, 3, 0, 1, 0, 2, 1, 3, 2, 0, 3, 1, 2, 0, 3, 1]
ROLE_BITS = sum(r << (2 * h) for h, r in enumerate(ROLES))
TAGC = 0x9E3779B1

def gen(name="gated_mix__mha_block__linear_attn_block__prompt_kernel", bb=20, poll_at=47, force_fallback=False, NB=4, QM=3, stamps=False,
        fine=False, rotm=1, pace=2, flag_lag=10, direct=True, chk_at=22, rot=True, bchk=5, outsc=""):
    A = Asm()
    V = Alloc("v", 1, 256); AG = Alloc("a", 0, 256)
    N = "f"
    sW = 16
    sX, sM, sPA, sPB = 20, 24, 28, 32
    sO, sA, sB = 20, 24, 28
    W_, H, QB, T0, T1, T2, TAG = 36, 37, 38, 40, 41, 42, 67
    R_, J_, KC, XB, WB_, A_, B_, LX, LM, C0, KC0, EPS, FLP = 39, 43, 44, 45, 46, 47, 48, 49, 50, 52, 53, 54, 55
    KO, IDX, RT2, CG, OK, OSL, TW, CNT, KH = 39, 43, 44, 45, 46, 47, 48, 49, 52
    KOS = [KO, 3] + [0, 1] + list(range(4, 16))
    WOS = [32, 33, 34, 35]; WL = 54
    KVPB, FBA, FKA, OAS, OBS, FLO, FLT, OBT = 56, 57, 58, 59, 60, 61, 62, 53
    RED = [63, 64, 65]; KVXA = 66
    lane = V(); t0 = V(); t1 = V(); t2 = V(); t3 = V(); vL16 = V(); vKV = V(); vg = V(); vRw = V(); vRr = V(); vfl = V(); vfa = V(); vfb = V()
    vWo = V(4); vWr = V(6)
    tp = V(2, 2); sent = V(4, 4)
    big = V(136, 4)
    Q = [big[8*j:8*j+8] for j in range(4)]
    Sb = [big[32:48], big[48:64]]
    P = big[64:72]
    O = [big[72+16*j:88+16*j] for j in range(4)]
    stg = V(64, 4)
    pq = V(8, 4); obuf = V(8, 4)
    KVr = [AG(16, 4) for _ in range(NB)]
    oBf = AG(64, 4); woA = AG(128, 4)
    acc = [[O[0], O[1]], [O[2], O[3]]]
    ob = [[big[0:8], big[8:16]], [big[16:24], big[64:72]]]
    accQ, accP = Sb
    Xk = woA[0:112]
    Xf = [stg[0:4], stg[4:8]]; Wf = [stg[8:16], stg[16:24]]; ptmp = stg[24:32]
    vXA, vXB, vM, vPw = vWo[0], vWo[1], vWo[2], vWo[3]
    vXo = stg[32:36]; vXt = stg[36:40]; vT = stg[40:42]; vP2 = stg[42]; vGa = stg[43:45]; vG = stg[45:47]; vdum = stg[47]; vEp = stg[48]; vpf = vRr
    A(kernel_head(name))
    ST = Stamps(A, stamps, 1)
    STc = lambda n: None if fine else ST(n)
    A("s_cmp_ge_u32 s2, 256")
    A(f"s_cbranch_scc1 L_{N}_end")
    ST("rt0", True); ST("start")
    A("s_load_dwordx2 s[64:65], s[0:1], 72")
    A("s_load_dwordx8 s[4:11], s[0:1], 0")
    A("s_load_dwordx8 s[56:63], s[0:1], 32")
    A(f"v_lshrrev_b32 {t0}, 6, v0")
    A(f"v_and_b32 {lane}, 63, v0")
    A(f"v_readfirstlane_b32 s{W_}, {t0}")
    A("s_getpc_b64 s[14:15]")
    A.label(f"L_{N}_pc")
    A("s_lshr_b32 s3, s2, 3"); A("s_lshl_b32 s3, s3, 2"); A(f"s_add_u32 s3, s3, s{W_}"); A("s_lshl_b32 s3, s3, 9")
    A(f"v_and_b32 {t0}, 3, {lane}"); A(f"v_lshl_add_u32 {t0}, {t0}, 7, s3"); A(f"v_min_u32 {t0}, L_{N}_fb-L_{N}_pc-4, {t0}")
    A(f"global_load_dword {vdum}, {t0}, s[14:15]")
    A(f"s_and_b32 s{J_}, s2, 3")
    A(f"s_bfe_u32 s{T0}, s2, 0x20003"); A(f"s_lshl_b32 s{H}, s{J_}, 2"); A(f"s_add_u32 s{H}, s{H}, s{T0}")
    A(f"s_lshr_b32 s{T1}, s2, 5"); A(f"s_bfe_u32 s{QB}, s2, 0x10002"); A(f"s_lshl_b32 s{QB}, s{QB}, 3"); A(f"s_add_u32 s{QB}, s{QB}, s{T1}")
    A(f"s_lshl_b32 s{T0}, s{H}, 1"); A(f"s_lshr_b32 s{R_}, {hx(ROLE_BITS)}, s{T0}"); A(f"s_and_b32 s{R_}, s{R_}, 3")
    if rot:
        A(f"s_mul_i32 s{T1}, s2, 9363"); A(f"s_lshr_b32 s{T1}, s{T1}, 16"); A(f"s_mul_i32 s{T1}, s{T1}, 7"); A(f"s_sub_u32 s{KC}, s2, s{T1}")
    else: A(f"s_mov_b32 s{KC}, 0")
    A(f"s_mov_b32 s{KC0}, s{KC}")
    A(f"s_and_b32 s{A_}, s{W_}, 1"); A(f"s_lshr_b32 s{B_}, s{W_}, 1")
    A(f"s_lshl_b32 s{T0}, s{QB}, 2"); A(f"s_add_u32 s{T0}, s{T0}, s{W_}"); A(f"s_mul_i32 s{XB}, s{T0}, {32*XROW}")
    A(f"s_mul_i32 s{WB_}, s{W_}, {16*WROW}")
    A(f"s_lshl_b32 s{LX}, s{W_}, 12"); A(f"s_add_u32 s{LM}, s{LX}, 16384")
    A(f"v_lshrrev_b32 {t0}, 3, {lane}"); A(f"v_and_b32 {t1}, 7, {lane}"); A(f"v_xor_b32 {t2}, {t0}, {t1}"); A(f"v_lshlrev_b32 {t2}, 4, {t2}")
    A(f"v_mul_u32_u24 {t3}, {XROW}, {t0}"); A(f"v_add_u32 {vXA}, {t2}, {t3}"); A(f"v_xor_b32 {vXB}, 16, {vXA}")
    A(f"s_lshl_b32 s{T0}, s{J_}, 1"); A(f"s_and_b32 s{T1}, s{R_}, 1"); A(f"s_add_u32 s{T0}, s{T0}, s{T1}"); A(f"s_mul_i32 s{T0}, s{T0}, 112")
    A(f"s_add_u32 s{T0}, s{T0}, 896")
    A(f"s_add_u32 s{T1}, s{R_}, 1"); A(f"s_mul_i32 s{T1}, s{T1}, 896"); A(f"s_mul_i32 s{T2}, s{J_}, 224"); A(f"s_add_u32 s{T1}, s{T1}, s{T2}")
    A(f"s_cmp_lt_u32 s{R_}, 2")
    A(f"s_cselect_b32 s{T0}, s{T1}, s{T0}"); A(f"s_cselect_b32 s{T1}, 4, 3"); A(f"s_cselect_b32 s{T2}, 15, 7"); A(f"s_cselect_b32 s{EPS}, 13, 6")
    A(f"v_lshrrev_b32 {t0}, 4, {lane}"); A(f"v_lshlrev_b32 {t1}, 2, {t0}"); A(f"v_sub_u32 {t1}, {lane}, {t1}"); A(f"v_and_b32 {t1}, 15, {t1}")
    A(f"v_lshrrev_b32 {t2}, s{T1}, {t1}"); A(f"v_mul_u32_u24 {t2}, 896, {t2}"); A(f"v_and_b32 {t1}, s{T2}, {t1}"); A(f"v_min_u32 {t1}, s{EPS}, {t1}")
    A(f"v_lshl_add_u32 {t1}, {t1}, 4, {t2}"); A(f"v_mul_u32_u24 {t3}, {WROW}, {t0}"); A(f"v_add3_u32 {vM}, {t1}, {t3}, s{T0}")
    A("s_waitcnt lgkmcnt(0)")
    srd(A, sX, "s4", "s5", X_BYTES)
    A(f"s_cmp_lt_u32 s{R_}, 2")
    A(f"s_cselect_b32 s{sM}, s6, s56"); A(f"s_cselect_b32 s{sM+1}, s7, s57"); A(f"s_mov_b32 s{sM+2}, {hx(W_BYTES)}"); A(f"s_mov_b32 s{sM+3}, 0x20000")
    vm = VmQ(); vm.issue("pf")
    STc("args")
    def dma_groups(i):
        sl = (i % 5) * SLOT
        g = []
        for blk in range(4):
            pre = [f"s_lshl_b32 s{T0}, s{KC}, 7", f"s_add_u32 m0, s{LX}, {sl}", f"s_add_u32 s{T0}, s{T0}, s{XB}"] if blk == 0 else [f"s_add_u32 s{T0}, s{T0}, 6144"]
            g.append(pre + [f"buffer_load_dwordx4 {vXA if blk < 2 else vXB}, s[{sX}:{sX+3}], s{T0} offen offset:{blk*1024} lds"])
        for q in range(4):
            pre = [f"s_mul_i32 s{T1}, s{KC}, {64*WROW}", f"s_add_u32 m0, s{LM}, {sl}", f"s_add_u32 s{T1}, s{T1}, s{WB_}"] if q == 0 else [f"s_add_u32 s{T1}, s{T1}, {4*WROW-1024}"]
            post = [f"s_add_u32 s{KC}, s{KC}, 1", f"s_cmp_eq_u32 s{KC}, 7", f"s_cselect_b32 s{KC}, 0, s{KC}"] if q == 3 else []
            g.append(pre + [f"buffer_load_dwordx4 {vM}, s[{sM}:{sM+3}], s{T1} offen offset:{q*1024} lds"] + post)
        return g
    def p_groups(i):
        return [[f"s_mul_i32 s{T1}, s{KC}, {64*WROW}", f"s_lshr_b32 s{T0}, s{LX}, 2", f"s_add_u32 m0, s{T0}, {L_PA + i*4096}", f"s_add_u32 s{T1}, s{T1}, s{WB_}",
                 f"buffer_load_dwordx4 {vPw}, s[{sPA}:{sPA+3}], s{T1} offen lds"],
                [f"s_add_u32 m0, s{T0}, {L_PB + i*4096}", f"s_add_u32 s{KC}, s{KC}, 1",
                 f"buffer_load_dwordx4 {vPw}, s[{sPB}:{sPB+3}], s{T1} offen lds", f"s_cmp_eq_u32 s{KC}, 7", f"s_cselect_b32 s{KC}, 0, s{KC}"]]
    for x in dma_groups(0):
        for y in x: A(y)
        vm.issue("c0")
    srd(A, sPA, "s6", "s7", W_BYTES); srd(A, sPB, "s56", "s57", W_BYTES); srd(A, sW, "s64", "s65", WS_USED)
    A(f"v_lshlrev_b32 {vL16}, 4, {lane}")
    A(f"v_lshrrev_b32 {t0}, 2, {lane}"); A(f"v_mul_u32_u24 {t0}, {WROW}, {t0}"); A(f"v_and_b32 {t1}, 3, {lane}"); A(f"v_lshl_add_u32 {t0}, {t1}, 4, {t0}")
    A(f"s_mul_i32 s{T0}, s{H}, 56"); A(f"s_andn2_b32 s{T0}, s{T0}, 15"); A(f"v_add_u32 {vPw}, s{T0}, {t0}")
    A(f"s_and_b32 s{T2}, s{H}, 1")
    for u in range(2):
        A(f"v_lshrrev_b32 {t0}, 4, {lane}"); A(f"v_add_u32 {t0}, {4*u}, {t0}"); A(f"v_lshlrev_b32 {t0}, 6, {t0}")
        A(f"v_and_b32 {t1}, 15, {lane}"); A(f"s_lshl_b32 s{T0}, s{W_}, 4"); A(f"v_add3_u32 {t0}, {t0}, {t1}, s{T0}")
        A(f"v_min_u32 {t0}, 448, {t0}")
        A(f"s_mul_i32 s{T0}, s{T2}, 56"); A(f"s_sub_u32 s{T0}, {L_PB + 56}, s{T0}"); A(f"v_lshl_add_u32 {vGa[u]}, {t0}, 6, s{T0}")
        A(f"v_subrev_u32 {t0}, s{T2}, {t0}"); A(f"v_max_i32 {t0}, 0, {t0}"); A(f"v_min_u32 {t0}, 447, {t0}")
        A(f"s_lshl_b32 s{T0}, s{KC0}, 6"); A(f"v_add_u32 {t0}, s{T0}, {t0}")
        A(f"v_subrev_u32 {t1}, 448, {t0}"); A(f"v_min_u32 {t0}, {t0}, {t1}"); A(f"v_lshlrev_b32 {t0}, 1, {t0}")
        A(f"global_load_ushort {vG[u]}, {t0}, s[60:61]"); vm.issue("g")
    A(f"v_mov_b32 {t0}, {hx(WS_EP)}")
    A(f"buffer_load_dword {vEp}, {t0}, s[{sW}:{sW+3}], 0 offen sc1"); vm.issue("g")
    A(f"v_and_b32 {t0}, 7, {lane}"); A(f"v_bfe_u32 {t1}, {lane}, 3, 2"); A(f"v_lshrrev_b32 {t2}, 5, {lane}"); A(f"v_xor_b32 {t2}, {t2}, {t0}")
    A(f"v_lshrrev_b32 {t3}, 1, {t1}"); A(f"v_xor_b32 {t2}, {t2}, {t3}"); A(f"v_lshlrev_b32 {t2}, 4, {t2}")
    A(f"v_lshl_add_u32 {t2}, {t0}, 7, {t2}"); A(f"v_lshl_add_u32 {t2}, {t1}, 10, {t2}")
    A(f"v_add_u32 {vXo[0]}, s{LX}, {t2}")
    for j in range(1, 4): A(f"v_xor_b32 {vXo[j]}, {32*j}, {vXo[0]}")
    for j in range(4): A(f"v_xor_b32 {vXt[j]}, 0x1000, {vXo[j]}")
    A(f"v_bfe_u32 {t0}, {lane}, 2, 2"); A(f"v_and_b32 {t1}, 3, {lane}"); A(f"v_lshlrev_b32 {t1}, 3, {t1}")
    A(f"v_and_b32 {t2}, 16, {lane}"); A(f"v_lshl_add_u32 {t1}, {t2}, 1, {t1}")
    A(f"v_lshrrev_b32 {t2}, 5, {lane}"); A(f"v_lshl_add_u32 {t2}, {t2}, 3, {t0}")
    A(f"s_mul_i32 s{T0}, s{A_}, 56"); A(f"s_lshl_b32 s{T1}, s{T0}, 1")
    A(f"s_cmp_lt_u32 s{R_}, 2")
    A(f"s_cselect_b32 s{T1}, s{T1}, s{T0}"); A(f"s_cselect_b32 s{T0}, 56, 0x80"); A(f"s_add_u32 s{T0}, s{T0}, s{T1}")
    A(f"v_lshl_add_u32 {t3}, {t0}, 6, {t1}")
    for t, sreg in ((0, T1), (1, T0)):
        A(f"v_add_u32 {vT[t]}, s{sreg}, {t3}"); A(f"v_and_b32 {vT[t]}, 0xff, {vT[t]}"); A(f"v_lshl_add_u32 {vT[t]}, {t2}, 8, {vT[t]}"); A(f"v_add_u32 {vT[t]}, 16384, {vT[t]}")
    A(f"s_lshl_b32 s{T2}, s{T2}, 3"); A(f"s_add_u32 s{T2}, s{T2}, {L_PA}")
    A(f"v_lshl_add_u32 {t3}, {t2}, 6, {t1}"); A(f"v_add_u32 {vP2}, s{T2}, {t3}")
    for x in dma_groups(1):
        for y in x: A(y)
        vm.issue("c1")
    A("s_lshr_b32 s3, s2, 3"); A("s_lshl_b32 s3, s3, 2"); A(f"s_add_u32 s3, s3, s{W_}"); A("s_cmp_lt_u32 s3, 64")
    A("s_cselect_b32 s12, s8, s58"); A("s_cselect_b32 s13, s9, s59"); A(f"s_mov_b32 s14, {hx(WO_BYTES)}"); A("s_mov_b32 s15, 0x20000")
    A("s_and_b32 s3, s3, 63"); A("s_mul_i32 s3, s3, 49"); A(f"v_min_u32 {vpf}, 48, {lane}"); A(f"v_add_lshl_u32 {vpf}, {vpf}, s3, 7")
    A(f"s_cmp_lg_u32 s{R_}, 0")
    A(f"s_cbranch_scc1 L_{N}_N")

    def reads(step, ks, buf):
        r = [[f"ds_read_b128 {Xk[4*step:4*step+4]}, {vXo[ks]}"], [f"ds_read_b128 {Xf[buf]}, {vXt[ks]}"]]
        for t in range(2):
            for half in range(2):
                r.append([f"ds_read_b64_tr_b16 {Wf[buf][4*t+2*half:4*t+2*half+2]}, {vT[t]} offset:{ks*4096 + half*1024}"])
        return r
    def pass1(variant, prefill):
        q = VmQ(); q.q = list(vm.q)
        A(f"s_waitcnt vmcnt({q.wait_for('c0')})")
        if stamps and not fine: ST.n = 3; ST.names = ST.names[:3]
        STc("c0")
        A("s_barrier")
        for g in reads(0, 0, 0): A(g[0])
        step = 0
        pf = list(prefill)
        for i in range(7):
            if i + 2 < 7: dm = [(f"c{i+2}", x) for x in dma_groups(i + 2)]
            else: dm = [("P", x) for c in (range(0, 4) if i == 5 else range(4, 7)) for x in p_groups(c)]
            for ks in range(4):
                buf = step & 1
                m = []
                for t in range(2):
                    for rl in range(2):
                        x, w = (Xk[4*step:4*step+4] if rl == 0 else Xf[buf]), Wf[buf][4*t:4*t+4]
                        c = "0" if step == 0 else str(acc[rl][t])
                        m.append(f"{MFMA} {acc[rl][t]}, {w}, {x}, {c}" if variant == "T" else f"{MFMA} {acc[rl][t]}, {x}, {w}, {c}")
                A("s_waitcnt lgkmcnt(0)")
                d = dm[3*ks:3*ks+3] if ks < 2 else (dm[6:8] if ks == 2 else [])
                for tg, x in d: q.issue(tg)
                d = [x for tg, x in d] + [[], [], []]
                if ks < 3:
                    rd = reads(step + 1, ks + 1, buf ^ 1)
                    fill = [sum(rd[0:3], []), sum(rd[3:6], []) + d[0], d[1], d[2]]
                    for k in range(4):
                        for _ in range(2):
                            if pf: fill[k] = fill[k] + [pf.pop()]
                    interleave(A, m, fill, per=1)
                elif i < 6:
                    n = q.wait_for(f"c{i+1}")
                    delta = SLOT if (i + 1) % 5 else -4 * SLOT
                    upd = [f"v_add_u32 {x}, {hx(delta)}, {x}" for x in [vXo[0], vXt[0], vT[0], vT[1]] + [y[k] for k in range(1, 4) for y in (vXo, vXt)]]
                    rd = reads(step + 1, 0, buf ^ 1)
                    fill = [[f"s_waitcnt vmcnt({n})", "s_barrier"] + upd[:4], sum(rd[0:6], []), upd[4:], []]
                    interleave(A, m, fill, per=1)
                else:
                    for x in m: A(x)
                step += 1
        assert not pf
        STc("pass1")
        return q
    def cvt_tile(rl, t, lo_, hi_):
        for i in range(lo_, hi_): A(f"v_cvt_pk_bf16_f32 {ob[rl][t][i]}, {acc[rl][t][2*i]}, {acc[rl][t][2*i+1]}")
    def phi(x):
        for g in range(0, 16, 8):
            for i in range(8): A(f"v_mul_f32 {ptmp[i]}, s{T2}, {x[g+i]}")
            for i in range(8): A(f"v_exp_f32_e64 {ptmp[i]}, {ptmp[i]} clamp")
            for i in range(8): A(f"v_max_f32 {x[g+i]}, s{EPS}, {x[g+i]}")
            for i in range(8): A(f"v_add_f32 {x[g+i]}, {x[g+i]}, {ptmp[i]}")
    def flag_store(sreg):
        return [f"v_lshlrev_b32 {t0}, 2, {lane}", f"v_mov_b32 {t1}, s{TAG}", "s_mov_b64 exec, 0xffffffff",
                f"buffer_store_dword {t1}, {t0}, s[{sW}:{sW+3}], s{sreg} offen sc1", "s_mov_b64 exec, -1"]
    def patch_and_sync(q, drain=False):
        A(f"s_waitcnt vmcnt({0 if drain else q.wait_for(['P', 'g'])})")
        A(f"v_readfirstlane_b32 s66, {vEp}")
        for u in range(2): A(f"ds_write_b16 {vGa[u]}, {vG[u]}")
    def kv_epilogue(q, T):
        A(f"s_lshl_b32 s{T0}, s{J_}, 1"); A(f"s_add_u32 s{T0}, s{T0}, s{A_}"); A(f"s_lshl_b32 s{T0}, s{T0}, 5"); A(f"s_add_u32 s{T0}, s{T0}, s{QB}")
        A(f"s_lshl_b32 s{T0}, s{T0}, 2"); A(f"s_add_u32 s{T0}, s{T0}, s{W_}"); A(f"s_lshl_b32 s{T0}, s{T0}, 12"); A(f"s_xor_b32 s{T1}, s{T0}, 0x1000")
        off = 0 if T else 2048
        if not T: A("s_mov_b32 exec_lo, 0xefffffff"); A("s_mov_b32 exec_hi, 0xefffffff")
        else: A("s_nop 1")
        for t in range(2):
            for rl in range(2):
                if T:
                    cvt_tile(rl, t, 0, 6); A("s_mov_b64 exec, 0xffffffff"); cvt_tile(rl, t, 6, 8)
                else: cvt_tile(rl, t, 0, 8)
                A("s_mov_b64 exec, -1")
                for st in range(2):
                    A(f"buffer_store_dwordx4 {ob[rl][t][4*st:4*st+4]}, {vL16}, s[{sW}:{sW+3}], s{[T0, T1][rl]} offen offset:{off+1024*st} sc1"); q.issue("st")
                if t == 0: A(f"s_add_u32 s{[T0, T1][rl]}, s{[T0, T1][rl]}, {64*4096}")
                if not T and (t, rl) != (1, 1): A("s_mov_b32 exec_lo, 0xefffffff"); A("s_mov_b32 exec_hi, 0xefffffff")
        A(f"s_lshl_b32 s{T0}, s{J_}, 1"); A(f"s_add_u32 s{T0}, s{T0}, s{R_}"); A(f"s_lshl_b32 s{T0}, s{T0}, 4"); A(f"s_add_u32 s{T0}, s{T0}, s{QB}")
        A(f"s_lshl_b32 s{T0}, s{T0}, 7"); A(f"s_add_u32 s{FLP}, s{T0}, {hx(WS_FKV)}")
        patch_and_sync(q, True)

    pre = []
    for rl in range(2):
        for t in range(2): pre += [f"v_mov_b32 {ob[rl][t][6]}, {hx(ONES)}", f"v_mov_b32 {ob[rl][t][7]}, 0x3f80"]
    q = pass1("T", pre)
    kv_epilogue(q, True)
    A(f"s_branch L_{N}_pass2")
    A.label(f"L_{N}_N")
    A(f"s_cmp_eq_u32 s{R_}, 1")
    A(f"s_cselect_b32 s{C0}, {hx(ONES)}, 0")
    pre = []
    for rl in range(2):
        pre += [f"v_mov_b32 {ob[rl][0][i]}, s{C0}" for i in range(8)] + [f"v_mov_b32 {ob[rl][1][i]}, {hx(ONES)}" for i in range(8)]
    q = pass1("N", pre)
    qB = VmQ(); qB.q = list(q.q)
    A(f"s_cmp_lg_u32 s{R_}, 1")
    A(f"s_cbranch_scc1 L_{N}_B")
    kv_epilogue(q, False)
    A(f"s_branch L_{N}_pass2")
    A.label(f"L_{N}_B")
    A(f"s_mov_b32 s{T2}, {hx(f32bits(LOG2E))}"); A(f"s_mov_b32 s{EPS}, {hx(f32bits(1e-6))}")
    A(f"s_lshl_b32 s{T0}, s{W_}, 11"); A(f"s_add_u32 s{T0}, s{T0}, {4*SLOT}"); A(f"v_add_u32 {t0}, s{T0}, {vL16}"); A(f"v_xor_b32 {t1}, 0x1000, {t0}")
    A("s_nop 5")
    kvp = accQ
    for rl in range(2):
        phi(acc[rl][0])
        A("s_mov_b32 exec_lo, 0xefffffff"); A("s_mov_b32 exec_hi, 0xefffffff")
        cvt_tile(rl, 1, 0, 8)
        A("s_mov_b32 exec_lo, 0x0fffffff"); A("s_mov_b32 exec_hi, 0x0fffffff")
        cvt_tile(rl, 0, 0, 8)
        A("s_mov_b64 exec, -1")
        A("s_nop 0")
        for st in range(2):
            A(f"{MFMA} {kvp}, {ob[rl][0][4*st:4*st+4]}, {ob[rl][1][4*st:4*st+4]}, {'0' if rl == 0 and st == 0 else kvp}")
    A(f"s_lshl_b32 s{T0}, s{J_}, 1"); A(f"s_and_b32 s{T1}, s{R_}, 1"); A(f"s_add_u32 s{T0}, s{T0}, s{T1}"); A(f"s_lshl_b32 s{T0}, s{T0}, 1"); A(f"s_add_u32 s{T0}, s{T0}, s{A_}")
    A(f"s_lshl_b32 s{T0}, s{T0}, 1"); A(f"s_add_u32 s{T0}, s{T0}, s{B_}")
    A(f"s_lshr_b32 s{T1}, s{T0}, 2"); A(f"s_lshl_b32 s{T1}, s{T1}, 4"); A(f"s_add_u32 s{T1}, s{T1}, s{QB}"); A(f"s_lshl_b32 s{T1}, s{T1}, 7"); A(f"s_add_u32 s{FLP}, s{T1}, {hx(WS_FB)}")
    A(f"s_lshl_b32 s{T0}, s{T0}, 5"); A(f"s_add_u32 s{T0}, s{T0}, s{QB}"); A(f"s_lshl_b32 s{T0}, s{T0}, 10"); A(f"s_add_u32 s{T0}, s{T0}, {hx(WS_KVP)}"); A(f"s_add_u32 s{T1}, s{T0}, 16384")
    patch_and_sync(qB)
    A(f"s_cmp_eq_u32 s{B_}, 1")
    A(f"s_cbranch_scc1 L_{N}_b1")
    for b in range(2):
        if b == 1: A.label(f"L_{N}_b1")
        snd, keep = kvp[8*(1-b):8*(1-b)+8], kvp[8*b:8*b+8]
        A(f"ds_write_b128 {t0}, {snd[0:4]}"); A(f"ds_write_b128 {t0}, {snd[4:8]} offset:1024")
        A("s_waitcnt lgkmcnt(0)")
        A("s_barrier")
        A(f"ds_read_b128 {ptmp[0:4]}, {t1}"); A(f"ds_read_b128 {ptmp[4:8]}, {t1} offset:1024")
        A("s_waitcnt lgkmcnt(0)")
        for i in range(8): A(f"v_add_f32 {obuf[i]}, {keep[i]}, {ptmp[i]}")
        A(f"buffer_store_dwordx4 {obuf[0:4]}, {vL16}, s[{sW}:{sW+3}], s{T0} offen sc1")
        A(f"buffer_store_dwordx4 {obuf[4:8]}, {vL16}, s[{sW}:{sW+3}], s{T1} offen sc1")
        A(f"s_branch L_{N}_pass2b")
    A.label(f"L_{N}_pass2")
    A("s_waitcnt lgkmcnt(0)")
    A("s_barrier")
    A(f"s_add_u32 s{TAG}, s66, {hx(TAGC)}")
    A(f"s_cmp_lg_u32 s{W_}, 0"); A(f"s_cbranch_scc1 L_{N}_pass2b")
    for x in flag_store(FLP): A(x)
    A.label(f"L_{N}_pass2b")
    STc("epi1")
    W3 = [stg[8:16], stg[16:24], stg[24:32]]
    def reads2(k):
        return [f"ds_read_b64_tr_b16 {W3[k%3][4*t+2*half:4*t+2*half+2]}, {vP2} offset:{t*(L_PB-L_PA) + k*1024 + half*256}" for t in range(2) for half in range(2)]
    for x in reads2(0) + reads2(1): A(x)
    A(f"s_add_u32 s{TAG}, s66, {hx(TAGC)}")
    A(f"s_lshr_b32 s51, s{R_}, 1")
    A(f"s_lshl_b32 s{T0}, s{J_}, 12"); A(f"s_add_u32 s{T0}, s{T0}, {hx(WS_FKV)}")
    A(f"v_and_b32 {t2}, 31, {lane}"); A(f"v_lshl_add_u32 {vfa}, {t2}, 7, s{T0}")
    kvld = f"buffer_load_dword {vfl}, {vfa}, s[{sW}:{sW+3}], 0 offen sc1"
    for k in range(28):
        rd = reads2(k + 2) if k < 26 else []
        A(f"s_waitcnt lgkmcnt({4 if k < 27 else 0})")
        A(f"{MFMA} {accQ}, {W3[k%3][0:4]}, {Xk[4*k:4*k+4]}, {'0' if k == 0 else accQ}")
        for x in rd[:2]: A(x)
        A(f"{MFMA} {accP}, {W3[k%3][4:8]}, {Xk[4*k:4*k+4]}, {'0' if k == 0 else accP}")
        for x in rd[2:]: A(x)
        if k == chk_at:
            A(f"s_cmp_lg_u32 s{W_}, 1"); A(f"s_cbranch_scc1 L_{N}_nochk"); A(kvld); A.label(f"L_{N}_nochk")
    STc("pass2")
    A(f"s_lshl_b32 s{T0}, s{H}, 2"); A(f"s_add_u32 s{T0}, s{T0}, s{W_}"); A(f"s_lshl_b32 s{T0}, s{T0}, 16"); A(f"v_add_u32 {vKV}, s{T0}, {vL16}")
    A(f"s_and_b32 s{KO}, s{QB}, {rotm}"); A(f"s_lshl_b32 s{KO}, s{KO}, {12 + 4 - rotm.bit_length()}")
    A(f"s_add_u32 s{KOS[1]}, s{KO}, 4096"); A(f"s_and_b32 s{KOS[1]}, s{KOS[1]}, 0xffff")
    A(f"s_lshl_b32 s{T0}, s{W_}, 11"); A(f"v_add_u32 {vRw}, s{T0}, {vL16}")
    A(f"s_mov_b32 s{T2}, {hx(f32bits(QSCALE))}")
    for i in (6, 7): A(f"v_mov_b32 {Q[3][i]}, 0")
    for i in range(16): A(f"v_mul_f32 {accQ[i]}, s{T2}, {accQ[i]}")
    for i in range(6): A(f"v_cvt_pk_bf16_f32 {Q[3][i]}, {accQ[2*i]}, {accQ[2*i+1]}")
    A("s_mov_b64 exec, 0xffffffff")
    for i in (6, 7): A(f"v_cvt_pk_bf16_f32 {Q[3][i]}, {accQ[2*i]}, {accQ[2*i+1]}")
    A("s_mov_b64 exec, -1")
    A(f"ds_write_b128 {vRw}, {Q[3][0:4]}"); A(f"ds_write_b128 {vRw}, {Q[3][4:8]} offset:1024")
    def spin(lbl, reload):
        A(f"s_mov_b32 s{CNT}, 0")
        A.label(f"L_{N}_{lbl}")
        A(f"v_cmp_ne_u32 vcc, s{TAG}, {vfl}")
        A(f"s_cbranch_vccz L_{N}_{lbl}_done")
        A(reload)
        A(f"s_add_u32 s{CNT}, s{CNT}, 1")
        A(f"s_cmp_lt_u32 s{CNT}, {SPIN}")
        A("s_waitcnt vmcnt(0)")
        A(f"s_cbranch_scc1 L_{N}_{lbl}")
        A.label(f"L_{N}_{lbl}_done")
    A(f"s_cmp_lg_u32 s{W_}, 1"); A(f"s_cbranch_scc1 L_{N}_pollKV_done")
    A("s_waitcnt vmcnt(0)")
    spin("pollKV", kvld)
    A("s_cmp_eq_u32 s51, 0"); A(f"s_cbranch_scc1 L_{N}_nodrain")
    A("s_waitcnt vmcnt(0)")
    A.label(f"L_{N}_nodrain")
    A("s_waitcnt lgkmcnt(0)")
    A("s_barrier")
    STc("kvseen")
    vm = VmQ(); issued = {}
    def emit(item):
        for x in item:
            if x.startswith("VM:"): vm.issue(x[3:]); issued[x[3:]] = issued.get(x[3:], 0) + 1
            elif x.startswith("WAIT:"):
                n = vm.wait_for(x[5:])
                if n is not None: A(f"s_waitcnt vmcnt({n})")
            elif x.startswith("SPIN:"):
                _, lbl, rl = x.split(":", 2); spin(lbl, rl)
            else: A(x)
    def ldk(n): return [[f"buffer_load_dwordx4 {KVr[n%NB][4*st:4*st+4]}, {vKV}, s[{sW}:{sW+3}], s{KOS[n]} offen offset:{st*1024} sc1", f"VM:K{n}"] for st in range(2)]
    def ldv(n): return [[f"buffer_load_dwordx4 {KVr[n%NB][8+4*st:12+4*st]}, {vKV}, s[{sW}:{sW+3}], s{KOS[n]} offen offset:{2048+st*1024} sc1", f"VM:V{n}"] for st in range(2)]
    for it in ldk(0) + ldv(0) + ldk(1) + ldv(1): emit(it)
    A(f"s_cmp_lg_u32 s{W_}, 0"); A(f"s_cbranch_scc1 L_{N}_nofb"); A("s_cmp_eq_u32 s51, 0"); A(f"s_cbranch_scc1 L_{N}_nofb")
    for x in flag_store(FLP): A(x)
    A.label(f"L_{N}_nofb")
    for j in range(3):
        A(f"s_add_u32 s{T0}, s{W_}, {j+1}"); A(f"s_and_b32 s{T0}, s{T0}, 3"); A(f"s_lshl_b32 s{T0}, s{T0}, 11"); A(f"v_add_u32 {t0}, s{T0}, {vL16}")
        for st in range(2): A(f"ds_read_b128 {Q[j][4*st:4*st+4]}, {t0} offset:{st*1024}")
    A(f"v_mov_b32 {t1}, {accP[12]}")
    A(f"s_mov_b32 s{T2}, {hx(f32bits(LOG2E))}"); A(f"s_mov_b32 s{EPS}, {hx(f32bits(1e-6))}")
    A(f"v_permlane32_swap_b32 {accP[12]}, {t1}")
    A(f"v_mul_f32 {t1}, {hx(f32bits(-LOG2E))}, {t1}"); A(f"v_exp_f32 {t1}, {t1}")
    for i in (6, 7): A(f"v_mov_b32 {pq[i]}, 0")
    A(f"v_add_f32 {t1}, 1.0, {t1}"); A(f"v_rcp_f32 {vg}, {t1}")
    phi(accP)
    for i in range(6): A(f"v_cvt_pk_bf16_f32 {pq[i]}, {accP[2*i]}, {accP[2*i+1]}")
    A("s_mov_b64 exec, 0xffffffff")
    for i in (6, 7): A(f"v_cvt_pk_bf16_f32 {pq[i]}, {accP[2*i]}, {accP[2*i+1]}")
    A("s_mov_b64 exec, -1")
    emit([f"buffer_load_dword {t3}, {vpf}, s[12:15], 0 offen", "VM:pf"])
    srd(A, sO, "s62", "s63", OUT_BYTES); srd(A, sA, "s8", "s9", WO_BYTES); srd(A, sB, "s58", "s59", WO_BYTES)
    A(f"s_lshl_b32 s{T0}, s{QB}, 2"); A(f"s_add_u32 s{T0}, s{T0}, s{W_}")
    A(f"s_lshl_b32 s{OSL}, s{T0}, 4"); A(f"s_add_u32 s{OSL}, s{OSL}, s{H}"); A(f"s_lshl_b32 s{OSL}, s{OSL}, 11")
    for n in range(2, 16):
        A(f"s_add_u32 s{KOS[n]}, s{KO}, {4096*n}"); A(f"s_and_b32 s{KOS[n]}, s{KOS[n]}, 0xffff")
    A(f"s_lshr_b32 s{IDX}, s2, 3")
    A(f"s_mul_i32 s{T0}, s{IDX}, 37"); A(f"s_lshr_b32 s{T0}, s{T0}, 8")
    A(f"s_mul_i32 s{CG}, s{T0}, 7"); A(f"s_sub_u32 s{CG}, s{IDX}, s{CG}")
    A(f"s_min_u32 s{T0}, s{T0}, 3")
    A(f"s_and_b32 s{T1}, s2, 7"); A(f"s_lshl_b32 s{T1}, s{T1}, 2"); A(f"s_add_u32 s{T0}, s{T0}, s{T1}")
    A(f"s_lshl_b32 s{T0}, s{T0}, 1"); A(f"s_and_b32 s{T1}, s{W_}, 1"); A(f"s_add_u32 s{RT2}, s{T0}, s{T1}")
    A(f"s_lshr_b32 s{KH}, s{W_}, 1")
    A(f"v_lshrrev_b32 {t0}, 3, {lane}"); A(f"v_mul_u32_u24 {t0}, {XROW}, {t0}")
    A(f"v_lshrrev_b32 {t1}, 2, {lane}"); A(f"v_and_b32 {t1}, 4, {t1}"); A(f"v_and_b32 {t2}, 7, {lane}"); A(f"v_xor_b32 {t1}, {t1}, {t2}")
    A(f"v_lshl_add_u32 {t0}, {t1}, 4, {t0}"); A(f"s_lshl_b32 s{T0}, s{CG}, 7"); A(f"v_add_u32 {vWo[0]}, s{T0}, {t0}")
    for q_ in range(1, 4): A(f"v_add_u32 {vWo[q_]}, {q_*(8*XROW-1024)}, {vWo[0]}")
    A(f"s_mul_i32 s{WOS[0]}, s{W_}, {112*XROW}")
    for g in range(1, 4): A(f"s_add_u32 s{WOS[g]}, s{WOS[0]}, {g*32*XROW}")
    A(f"s_mul_i32 s{WL}, s{W_}, 14336")
    A(f"s_lshl_b32 s{T1}, s{H}, 2"); A(f"s_add_u32 s{T1}, s{T1}, s{W_}"); A(f"s_lshl_b32 s{T1}, s{T1}, 14"); A(f"s_add_u32 s{KVPB}, s{T1}, {hx(WS_KVP)}")
    A(f"s_lshr_b32 s{T1}, s{H}, 1"); A(f"s_lshl_b32 s{T1}, s{T1}, 11"); A(f"s_add_u32 s{FBA}, s{T1}, {hx(WS_FB)}")
    A(f"s_add_u32 s{OAS}, s{OSL}, {hx(WS_OA)}"); A(f"s_add_u32 s{OBS}, s{OSL}, {hx(WS_OB)}")
    A(f"s_lshr_b32 s{T1}, s{OSL}, 4"); A(f"s_add_u32 s{FLO}, s{T1}, {hx(WS_FO)}")
    A(f"s_lshl_b32 s{T1}, s{RT2}, 11"); A(f"s_add_u32 s{FLT}, s{T1}, {hx(WS_FO)}")
    A(f"s_lshl_b32 s{T1}, s{RT2}, 1"); A(f"s_add_u32 s{T1}, s{T1}, s{KH}"); A(f"s_lshl_b32 s{T1}, s{T1}, 14"); A(f"s_add_u32 s{OBT}, s{T1}, {hx(WS_OB)}")
    A(f"s_mov_b32 s{TW}, s{OBT}")
    for j in range(3):
        A(f"s_add_u32 s{T1}, s{W_}, {j+1}"); A(f"s_and_b32 s{T1}, s{T1}, 3"); A(f"s_mul_i32 s{RED[j]}, s{T1}, 12288")
    A(f"s_lshl_b32 s{T0}, s{KH}, 10"); A(f"s_and_b32 s{T1}, s{W_}, 1"); A(f"s_lshl_b32 s{T1}, s{T1}, 3"); A(f"s_add_u32 s{T0}, s{T0}, s{T1}"); A(f"s_add_u32 s{KVXA}, s{T0}, {L_KVX}")
    A(f"v_and_b32 {t1}, 3, {lane}"); A(f"v_lshlrev_b32 {t1}, 3, {t1}")
    A(f"v_and_b32 {t0}, 16, {lane}"); A(f"v_lshl_add_u32 {t1}, {t0}, 1, {t1}")
    A(f"v_and_b32 {t0}, 8, {lane}"); A(f"v_lshl_add_u32 {t1}, {t0}, 3, {t1}")
    A(f"s_lshl_b32 s{T0}, s{KH}, 6"); A(f"v_xor_b32 {t1}, s{T0}, {t1}")
    A(f"v_bfe_u32 {t0}, {lane}, 2, 2"); A(f"v_lshl_add_u32 {t1}, {t0}, 7, {t1}")
    A(f"s_mul_i32 s{T0}, s{KH}, 28672"); A(f"s_add_u32 s{T0}, s{T0}, {L_WO + WO_IMG}")
    A(f"v_add_u32 {vWr[4]}, s{T0}, {t1}"); A(f"v_xor_b32 {vWr[5]}, 64, {vWr[4]}")
    A(f"v_lshrrev_b32 {t0}, 5, {lane}"); A(f"v_lshl_add_u32 {vWr[2]}, {t0}, 9, {vWr[4]}"); A(f"v_xor_b32 {vWr[3]}, 64, {vWr[2]}")
    A(f"v_subrev_u32 {vWr[0]}, {WO_IMG}, {vWr[2]}"); A(f"v_subrev_u32 {vWr[1]}, {WO_IMG}, {vWr[3]}")
    A(f"s_mul_i32 s{T1}, s{W_}, 12288"); A(f"v_add_u32 {vRr}, s{T1}, {vL16}")
    for i in (6, 7): A(f"v_mov_b32 {obuf[i]}, 0")
    for i in range(4): A(f"v_mov_b32 {sent[i]}, -1")
    A(f"v_and_b32 {vfb}, 15, {lane}"); A(f"v_lshlrev_b32 {vfb}, 7, {vfb}")
    A(f"v_and_b32 {vfa}, 7, {lane}"); A(f"s_lshl_b32 s{T0}, s{KH}, 3"); A(f"v_add_lshl_u32 {vfa}, {vfa}, s{T0}, 7")

    order = [(n, j) for n in range(0, 16 - QM) for j in range(4)] + [(n, j) for j in range(4) for n in range(16 - QM, 16)]
    firstO = set()
    def qk(t, st):
        n, j = order[t]
        return (f"{MFMA} {Sb[t&1]}, {KVr[n%NB][4*st:4*st+4]}, {Q[j][4*st:4*st+4]}, {'0' if st == 0 else Sb[t&1]}", [f"K{n}"])
    def pv(t, st):
        n, j = order[t]
        c = O[j] if j in firstO else "0"
        firstO.add(j)
        return (f"{MFMA} {O[j]}, {KVr[n%NB][8+4*st:12+4*st]}, {P[4*st:4*st+4]}, {c}", [f"V{n}"])
    ex = lambda t, i: f"v_exp_f32 {Sb[t&1][i]}, {Sb[t&1][i]}"
    cv = lambda t, i: f"v_cvt_pk_bf16_f32 {P[i]}, {Sb[t&1][2*i]}, {Sb[t&1][2*i+1]}"
    slots = []
    for t in range(64):
        slots.append((qk(t+1, 0) if t < 63 else None, [ex(t, i) for i in range(0, 4)]))
        slots.append((qk(t+1, 1) if t < 63 else None, [cv(t, 0), cv(t, 1)] + [ex(t, i) for i in range(4, 8)]))
        slots.append((pv(t-1, 1) if t > 0 else None, [cv(t, 2), cv(t, 3)] + [ex(t, i) for i in range(8, 12)]))
        slots.append((pv(t, 0), [cv(t, 4), cv(t, 5)] + [ex(t, i) for i in range(12, 16)] + [cv(t, 6), cv(t, 7)]))
    hi, lo, fix, mid = [], [], {}, {}
    def at(slot, items): fix.setdefault(slot, []).extend(items)
    lastK = {n: max(4*(t-1)+1 for t in range(64) if order[t][0] == n) for n in range(16)}
    lastV = {n: max(4*(t+1)+2 for t in range(64) if order[t][0] == n) for n in range(16)}
    for n in range(2, 16):
        p = n - NB
        eK = max(lastK[p] if p >= 0 else 0, (n - NB + 1) * 16); eV = max(lastV[p] if p >= 0 else 0, eK)
        hi.append((eK, ldk(n))); hi.append((eV, ldv(n)))
    fbld = f"buffer_load_dword {vfl}, {vfb}, s[{sW}:{sW+3}], s{FBA} offen sc1"
    lo.append((4, [[f"buffer_store_dwordx4 {sent}, {vL16}, s[{sW}:{sW+3}], s{OAS} offen offset:{st*1024} sc1", "VM:ost"] for st in range(2)]))
    lo.append(((bchk - 3) * 4, [[fbld, "VM:fbld"]]))
    at(bchk * 4, ["CHK:fbld:1", "WAIT:fbld", f"SPIN:pollP:{fbld}"])
    bl = []
    for b in range(16):
        if b % 4 == 0 and b: bl.append([f"s_add_u32 s{KVPB}, s{KVPB}, 4096"])
        bl.append([f"buffer_load_dwordx4 {stg[4*b:4*b+4]}, {vL16}, s[{sW}:{sW+3}], s{KVPB} offen offset:{(b%4)*1024} sc1", "VM:kvp"])
    lo.append((bchk * 4 + 1, bl))
    wl = []
    for br, srd_ in ((0, sB), (1, sA)):
        for q in range(14):
            if q % 4 == 0: wl.append([f"s_add_u32 m0, s{WL}, {L_WO + br*WO_IMG + q*1024}"])
            wl.append([f"buffer_load_dwordx4 {vWo[q%4]}, s[{srd_}:{srd_+3}], s{WOS[q//4]} offen offset:{(q%4)*1024} lds", "VM:wo"])
    lo.append((bchk * 4 + 2, wl))
    s0 = bb * 4
    adds = [f"v_add_f32 {stg[i]}, {stg[i]}, {stg[lvl+i]}" for lvl in (32, 16, 8, 4) for i in range(lvl)]
    at(s0, ["CHK:kvp:16", "WAIT:kvp"])
    for k in range(8): at(s0 + k, adds[8*k:8*k+8])
    at(s0 + 8, [f"v_add_u32 {t0}, s{KVXA}, {vL16}", f"v_cvt_pk_bf16_f32 {tp[0]}, {stg[0]}, {stg[1]}", f"v_cvt_pk_bf16_f32 {tp[1]}, {stg[2]}, {stg[3]}"])
    at(s0 + 9, [f"ds_write_b64 {t0}, {tp}"])
    at(s0 + 11, ["s_waitcnt lgkmcnt(0)", "s_barrier"])
    at(s0 + 12, [f"ds_read_b128 {stg[4:8]}, {vL16} offset:{L_KVX}", f"ds_read_b128 {stg[8:12]}, {vL16} offset:{L_KVX+1024}"])
    num = stg[16:32]
    at(s0 + 15, ["s_waitcnt lgkmcnt(0)"])
    mid[s0 + 15] = f"{MFMA} {num}, {stg[4:8]}, {pq[0:4]}, 0"
    mid[s0 + 19] = f"{MFMA} {num}, {stg[8:12]}, {pq[4:8]}, {num}"
    at(s0 + 17, ["s_barrier"])
    at(s0 + 22, [f"v_mov_b32 {t1}, {num[12]}", f"v_sub_f32 {t3}, 1.0, {vg}"])
    at(s0 + 23, [f"v_permlane32_swap_b32 {num[12]}, {t1}", f"v_add_f32 {t1}, {hx(f32bits(1e-6))}, {t1}", f"v_rcp_f32 {t1}, {t1}"])
    at(s0 + 24, [f"v_mul_f32 {t1}, {t1}, {t3}"])
    for k in range(4): at(s0 + 24 + k, [f"v_mul_f32 {num[i]}, {t1}, {num[i]}" for i in range(4*k, 4*k+4)])
    cvo = lambda acc_, i: f"v_cvt_pk_bf16_f32 {obuf[i]}, {acc_[2*i]}, {acc_[2*i+1]}"
    at(s0 + 28, [cvo(num, i) for i in range(4)])
    at(s0 + 29, [f"buffer_store_dwordx4 {obuf[0:4]}, {vL16}, s[{sW}:{sW+3}], s{OBS} offen sc1", "VM:ost", cvo(num, 4), cvo(num, 5),
                 "s_mov_b64 exec, 0xffffffff", cvo(num, 6), cvo(num, 7), "s_mov_b64 exec, -1"])
    at(s0 + 30, [f"buffer_store_dwordx4 {obuf[4:8]}, {vL16}, s[{sW}:{sW+3}], s{OBS} offen offset:1024 sc1", "VM:ost"])
    at(s0 + 30 + 4*flag_lag, ["CHK:ost:4", "WAIT:ost"] + flag_store(FLO) + ["VM:fl"])
    flld = f"buffer_load_dword {vfl}, {vfa}, s[{sW}:{sW+3}], s{FLT} offen sc1"
    lo.append(((poll_at - 3) * 4, [[flld, "VM:flld"]]))
    at(poll_at * 4, ["CHK:flld:1", "CHK:wo:28", "WAIT:flld", f"SPIN:pollB:{flld}"])
    ol = []
    for k in range(16):
        if k % 4 == 0 and k: ol.append([f"s_add_u32 s{TW}, s{TW}, 4096"])
        ol.append([f"buffer_load_dwordx4 {oBf[4*k:4*k+4]}, {vL16}, s[{sW}:{sW+3}], s{TW} offen offset:{(k%4)*1024} sc1", "VM:oB"])
    lo.append((poll_at * 4 + 1, ol))
    for j in range(3):
        tl = max(t for t in range(64) if order[t][1] == j)
        at((tl + 1) * 4 + 3, [f"v_add_u32 {vRw}, s{RED[j]}, {vL16}"])
        wr = [[f"ds_write_b128 {vRw}, {O[j][4*q:4*q+4]} offset:{j*4096 + q*1024}"] for q in range(4)]
        if j == 2:
            wr += [["s_waitcnt lgkmcnt(0)", "s_barrier"]]
            rd = [f"ds_read_b128 {stg[16*jj+4*q:16*jj+4*q+4]}, {vRr} offset:{jj*4096 + q*1024}" for jj in range(3) for q in range(4)]
            wr += [rd[i:i+3] for i in range(0, 12, 3)]
        hi.append(((tl + 1) * 4 + 4, wr))
    hi.sort(key=lambda e: e[0]); lo.sort(key=lambda e: e[0])
    ph, pl = deque(), deque()

    A(f"s_waitcnt vmcnt({vm.wait_for('K0')}) lgkmcnt(0)"); A(qk(0, 0)[0]); A(qk(0, 1)[0])
    ST("first")
    A("s_nop 9")
    lastlo = -99
    for i, (mf, valu) in enumerate(slots):
        if fine and i % 16 == 0 and (i // 16) in fine: ST(f"t{i//4}")
        while hi and hi[0][0] <= i: ph.extend(hi.pop(0)[1])
        while lo and lo[0][0] <= i: pl.extend(lo.pop(0)[1])
        if mf is not None:
            for tg in mf[1]: assert issued.get(tg) == 2, (i, tg)
            n = vm.wait_for(mf[1])
            if n is not None: A(f"s_waitcnt vmcnt({n})")
            A(mf[0])
        fx = fix.pop(i, [])
        nxt = slots[i+1][0] if i + 1 < len(slots) else None
        if nxt is not None and any(tg in vm.q for tg in nxt[1]) and all(issued.get(tg) == 2 for tg in nxt[1]):
            A(f"s_waitcnt vmcnt({vm.wait_for(nxt[1])})")
        elif fx and not fx[0].startswith("v_"): pass
        elif ph: emit(ph.popleft())
        elif pl:
            isld = any(x.startswith("VM:") for x in pl[0])
            if not isld or i - lastlo >= pace:
                emit(pl.popleft())
                if isld: lastlo = i
        for x in fx:
            if x.startswith("CHK:"):
                _, tg, c = x.split(":"); assert issued.get(tg) == int(c), (i, x, issued)
            else: emit([x])
        if i in mid:
            for x in valu[:4]: A(x)
            A(mid.pop(i))
            for x in valu[4:]: A(x)
        else:
            for x in valu: A(x)
    assert not hi and not lo and not fix and not mid
    A("s_nop 0")
    while ph: emit(ph.popleft())
    A(pv(63, 1)[0])
    while pl: emit(pl.popleft())
    ST("loop")

    def norm_store(acc_, gfac, base):
        for i in range(16): A(f"v_mul_f32 {acc_[i]}, {gfac}, {acc_[i]}")
        for i in range(4): A(cvo(acc_, i))
        A(f"buffer_store_dwordx4 {obuf[0:4]}, {vL16}, s[{sW}:{sW+3}], s{base} offen sc1")
        for i in (4, 5): A(cvo(acc_, i))
        A("s_mov_b64 exec, 0xffffffff")
        for i in (6, 7): A(cvo(acc_, i))
        A("s_mov_b64 exec, -1")
        A(f"buffer_store_dwordx4 {obuf[4:8]}, {vL16}, s[{sW}:{sW+3}], s{base} offen offset:1024 sc1")
    def reduce_norm(check):
        if not check:
            for j in range(3):
                for q in range(4): A(f"ds_read_b128 {stg[16*j+4*q:16*j+4*q+4]}, {vRr} offset:{j*4096 + q*1024}")
        A("s_waitcnt lgkmcnt(4)")
        for i in range(0, 16, 2): A(f"v_pk_add_f32 {stg[i:i+2]}, {stg[i:i+2]}, {stg[16+i:18+i]}")
        A("s_waitcnt lgkmcnt(0)")
        for i in range(0, 16, 2): A(f"v_pk_add_f32 {stg[i:i+2]}, {stg[i:i+2]}, {stg[32+i:34+i]}")
        for i in range(0, 16, 2): A(f"v_pk_add_f32 {O[3][i:i+2]}, {O[3][i:i+2]}, {stg[i:i+2]}")
        A(f"v_mov_b32 {t1}, {O[3][12]}")
        if check:
            A(f"v_pk_mul_f32 {tp}, {O[3][0:2]}, 0")
            for i in range(2, 16, 2): A(f"v_pk_fma_f32 {tp}, {O[3][i:i+2]}, 0, {tp}")
        else: A("s_nop 1")
        A(f"v_permlane32_swap_b32 {O[3][12]}, {t1}")
        if check:
            A(f"v_add_f32 {t2}, {tp[0]}, {tp[1]}")
            A(f"v_add_f32 {t2}, {t2}, {t1}")
            lo_, hi_ = (2.0**-60, 2.0**60) if not force_fallback else (2.0**30, 2.0**60)
            A(f"v_cmp_le_f32 vcc, {hx(f32bits(lo_))}, {t2}")
            A(f"s_mov_b32 s{T1}, {hx(f32bits(hi_))}")
            A(f"v_cmp_ge_f32 s[50:51], s{T1}, {t2}")
        A(f"v_rcp_f32 {t1}, {t1}")
        if check:
            A("s_and_b64 vcc, vcc, s[50:51]")
            A("s_cmp_eq_u64 vcc, -1")
            A(f"s_cselect_b32 s{OK}, 1, 0")
        else: A("s_nop 0")
        A(f"v_mul_f32 {t1}, {t1}, {vg}")
    reduce_norm(True)
    A(f"s_cbranch_scc0 L_{N}_vote")
    norm_store(O[3], t1, OAS)
    A.label(f"L_{N}_vote")
    STc("pub")
    A(f"v_mov_b32 {t1}, s{OK}"); A(f"v_and_b32 {t2}, 3, {lane}"); A(f"v_mul_u32_u24 {t2}, 12288, {t2}")
    A("s_mov_b64 exec, 1")
    A(f"ds_write_b32 {vRr}, {t1}")
    A("s_mov_b64 exec, -1")
    A("s_waitcnt vmcnt(2) lgkmcnt(0)")
    A("s_barrier")
    A(f"ds_read_b32 {t0}, {t2}")
    A("s_waitcnt lgkmcnt(0)")
    A(f"v_cmp_eq_u32 vcc, 0, {t0}")
    A(f"s_cbranch_vccnz L_{N}_fb")
    A.label(f"L_{N}_tail")
    A(f"s_cmp_ge_u32 s{IDX}, 28")
    A(f"s_cbranch_scc1 L_{N}_exit")
    def wo_reads(dst, br, k, c):
        hl, st = k >> 1, k & 1
        o = (28*hl + 16*st) * 128
        a2 = vWr[4 + c] if (br == 1 and k == 15) else vWr[2*br + c]
        return [f"ds_read_b64_tr_b16 {dst[0:2]}, {vWr[2*br + c]} offset:{o}", f"ds_read_b64_tr_b16 {dst[2:4]}, {a2} offset:{o+1024}"]
    accB = [stg[0:16], stg[16:32]]; accA = [big[64:80], big[80:96]]
    wt = [stg[32+4*i:36+4*i] for i in range(4)]
    seq = [(k, c) for k in range(16) for c in range(2)]
    for u in range(3):
        for x in wo_reads(wt[u], 0, *seq[u]): A(x)
    for u, (k, c) in enumerate(seq):
        if u + 3 < 32:
            for x in wo_reads(wt[(u+3) % 4], 0, *seq[u+3]): A(x)
        A(f"s_waitcnt lgkmcnt({2*min(31-u, 3)})")
        A(f"{MFMA} {accB[c]}, {wt[u % 4]}, {oBf[4*k:4*k+4]}, {'0' if k == 0 else accB[c]}")
    A(f"s_add_u32 s{TW}, s{OBT}, {hx(WS_OA - WS_OB)}")
    A(f"v_and_b32 {t0}, 7, {lane}"); A(f"v_lshlrev_b32 {t0}, 11, {t0}"); A(f"v_add_u32 {t0}, 1024, {t0}")
    A(f"s_mov_b32 s{CNT}, 0")
    oAf = big[0:64]
    def loadA():
        A(f"s_mov_b32 s{T0}, s{TW}")
        for k in range(16):
            if k % 4 == 0 and k: A(f"s_add_u32 s{T0}, s{T0}, 4096")
            A(f"buffer_load_dwordx4 {oAf[4*k:4*k+4]}, {vL16}, s[{sW}:{sW+3}], s{T0} offen offset:{(k%4)*1024} sc1")
    if direct: loadA()
    else: A(f"buffer_load_dword {vfl}, {t0}, s[{sW}:{sW+3}], s{TW} offen sc1")
    for u, (k, c) in enumerate(seq):
        for x in wo_reads(woA[4*u:4*u+4], 1, k, c): A(x)
    STc("Bdone")
    if direct: A(f"s_branch L_{N}_gemmA")
    else:
        A.label(f"L_{N}_pollA")
        A("s_waitcnt vmcnt(0)")
        A(f"v_cmp_eq_u32 vcc, -1, {vfl}")
        A(f"s_cbranch_vccz L_{N}_loadA")
        A(f"buffer_load_dword {vfl}, {t0}, s[{sW}:{sW+3}], s{TW} offen sc1")
        A(f"s_add_u32 s{CNT}, s{CNT}, 1")
        A(f"s_cmp_lt_u32 s{CNT}, {SPIN}")
        A(f"s_cbranch_scc1 L_{N}_pollA")
    A.label(f"L_{N}_loadA")
    loadA()
    A.label(f"L_{N}_gemmA")
    A(f"v_mov_b32 {t1}, 0")
    A("s_waitcnt lgkmcnt(0)")
    for u, (k, c) in enumerate(seq):
        if c == 0: A(f"s_waitcnt vmcnt({15-k})")
        A(f"{MFMA} {accA[c]}, {woA[4*u:4*u+4]}, {oAf[4*k:4*k+4]}, {accB[c] if k == 0 else accA[c]}")
        A(f"v_max3_u32 {t1}, {t1}, {oAf[4*k+2*c]}, {oAf[4*k+2*c+1]}")
    A(f"v_cmp_eq_u32 vcc, -1, {t1}")
    A(f"s_add_u32 s{CNT}, s{CNT}, 1")
    A(f"s_cmp_gt_u32 s{CNT}, {SPIN}")
    A(f"s_cbranch_scc1 L_{N}_store")
    A(f"s_cbranch_vccnz L_{N}_loadA")
    A.label(f"L_{N}_store")
    STc("Adone")
    A(f"s_xor_b32 s{T0}, s{W_}, 2"); A(f"s_mul_i32 s{T0}, s{T0}, 12288"); A(f"v_add_u32 {t2}, s{T0}, {vL16}")
    A(f"v_and_b32 {t0}, 31, {lane}"); A(f"v_mul_u32_u24 {t0}, {XROW}, {t0}")
    A(f"v_lshrrev_b32 {t1}, 5, {lane}"); A(f"v_lshl_add_u32 {t0}, {t1}, 4, {t0}")
    for q in range(4): A(f"ds_write_b128 {vRr}, {accA[1][4*q:4*q+4]} offset:{4096 + q*1024}")
    A(f"s_mul_i32 s{T0}, s{RT2}, {32*XROW}"); A(f"s_lshl_b32 s{T1}, s{CG}, 1"); A(f"s_add_u32 s{T1}, s{T1}, s{KH}"); A(f"s_lshl_b32 s{T1}, s{T1}, 6")
    A(f"s_add_u32 s{T0}, s{T0}, s{T1}")
    A("s_waitcnt lgkmcnt(0)")
    A("s_barrier")
    for q in range(4): A(f"ds_read_b128 {stg[4*q:4*q+4]}, {t2} offset:{4096 + q*1024}")
    for q in range(4):
        A(f"s_waitcnt lgkmcnt({3-q})")
        for i in (4*q, 4*q+2): A(f"v_pk_add_f32 {accA[0][i:i+2]}, {accA[0][i:i+2]}, {stg[i:i+2]}")
        for i in (2*q, 2*q+1): A(cvo(accA[0], i))
        if q & 1:
            p = 2*q - 2
            A("s_nop 1")
            A(f"v_permlane32_swap_b32 {obuf[p]}, {obuf[p+2]}")
            A(f"v_permlane32_swap_b32 {obuf[p+1]}, {obuf[p+3]}")
            A(f"buffer_store_dwordx4 {obuf[p:p+4]}, {t0}, s[{sO}:{sO+3}], s{T0} offen offset:{8*p} {outsc}")
    A(f"s_or_b32 s{T0}, s2, s{W_}"); A(f"s_cmp_lg_u32 s{T0}, 0"); A(f"s_cbranch_scc1 L_{N}_exit")
    A(f"v_mov_b32 {t2}, {hx(WS_EP)}"); A(f"v_mov_b32 {t1}, s{TAG}"); A("s_mov_b64 exec, 1")
    A(f"buffer_store_dword {t1}, {t2}, s[{sW}:{sW+3}], 0 offen sc1")
    A("s_mov_b64 exec, -1")
    A.label(f"L_{N}_exit")
    if stamps:
        A("s_waitcnt vmcnt(0)"); ST("end"); ST("rt1", True); ST.flush(sW, W_, t0, t1, T0)
        gen.names = ST.names
    A.label(f"L_{N}_end")
    A("s_endpgm")

    A.label(f"L_{N}_fb")
    mx = pq[4:8]
    kf, vf = KVr[0][0:8], KVr[0][8:16]
    for j in range(4): A(f"v_mov_b32 {mx[j]}, 0xff800000")
    def fb_loop(lbl, body, loadv):
        A(f"s_mov_b32 s{KO}, 0")
        A.label(lbl)
        for st in range(2): A(f"buffer_load_dwordx4 {kf[4*st:4*st+4]}, {vKV}, s[{sW}:{sW+3}], s{KO} offen offset:{st*1024} sc1")
        if loadv:
            for st in range(2): A(f"buffer_load_dwordx4 {vf[4*st:4*st+4]}, {vKV}, s[{sW}:{sW+3}], s{KO} offen offset:{2048+st*1024} sc1")
        A("s_waitcnt vmcnt(0)")
        for j in range(4):
            A(f"{MFMA} {Sb[0]}, {kf[0:4]}, {Q[j][0:4]}, 0")
            A(f"{MFMA} {Sb[0]}, {kf[4:8]}, {Q[j][4:8]}, {Sb[0]}")
            A("s_nop 11")
            body(j)
        A(f"s_add_u32 s{KO}, s{KO}, 4096")
        A(f"s_cmp_lt_u32 s{KO}, 0x10000")
        A(f"s_cbranch_scc1 {lbl}")
    def body_max(j):
        for i in range(0, 16, 2): A(f"v_max3_f32 {mx[j]}, {mx[j]}, {Sb[0][i]}, {Sb[0][i+1]}")
    fb_loop(f"L_{N}_fbmax", body_max, False)
    for j in range(4):
        A(f"s_add_u32 s{T0}, s{W_}, {j+1}"); A(f"s_and_b32 s{T0}, s{T0}, 3"); A(f"s_lshl_b32 s{T0}, s{T0}, 2"); A(f"s_add_u32 s{T0}, s{T0}, s{W_}"); A(f"s_lshl_b32 s{T0}, s{T0}, 8")
        A(f"v_lshl_add_u32 {t0}, {lane}, 2, s{T0}")
        A(f"ds_write_b32 {t0}, {mx[j]} offset:{L_MAX}")
    A("s_waitcnt lgkmcnt(0)")
    A("s_barrier")
    A(f"v_and_b32 {t2}, 31, {lane}")
    for j in range(4):
        A(f"s_add_u32 s{T0}, s{W_}, {j+1}"); A(f"s_and_b32 s{T0}, s{T0}, 3"); A(f"s_lshl_b32 s{T0}, s{T0}, 10")
        A(f"v_lshl_add_u32 {t0}, {t2}, 2, s{T0}")
        for i in range(8): A(f"ds_read_b32 {Sb[0][i]}, {t0} offset:{L_MAX + i*128}")
        A("s_waitcnt lgkmcnt(0)")
        A(f"v_max3_f32 {t1}, {Sb[0][0]}, {Sb[0][1]}, {Sb[0][2]}"); A(f"v_max3_f32 {t1}, {t1}, {Sb[0][3]}, {Sb[0][4]}")
        A(f"v_max3_f32 {t1}, {t1}, {Sb[0][5]}, {Sb[0][6]}"); A(f"v_max_f32 {t1}, {t1}, {Sb[0][7]}")
        A(f"v_sub_f32 {t1}, 0, {t1}")
        A(f"v_cvt_pk_bf16_f32 {t3}, {t1}, {t1}"); A(f"v_and_b32 {tp[0]}, 0xffff0000, {t3}"); A(f"v_sub_f32 {t1}, {t1}, {tp[0]}")
        A(f"v_cvt_pk_bf16_f32 {t3}, {t1}, {t1}"); A(f"v_and_b32 {tp[1]}, 0xffff0000, {t3}"); A(f"v_sub_f32 {t1}, {t1}, {tp[1]}")
        A("s_mov_b32 exec_lo, 0")
        A(f"v_cvt_pk_bf16_f32 {Q[j][6]}, {tp[0]}, {tp[1]}")
        A(f"v_cvt_pk_bf16_f32 {Q[j][7]}, {t1}, 0")
        A("s_mov_b32 exec_lo, -1")
    for j in range(4):
        for i in range(16): A(f"v_mov_b32 {O[j][i]}, 0")
    A("s_barrier")
    def body_pv(j):
        for i in range(16): A(f"v_exp_f32 {Sb[0][i]}, {Sb[0][i]}")
        A("s_nop 0")
        for i in range(8): A(f"v_cvt_pk_bf16_f32 {P[i]}, {Sb[0][2*i]}, {Sb[0][2*i+1]}")
        A("s_nop 1")
        A(f"{MFMA} {O[j]}, {vf[0:4]}, {P[0:4]}, {O[j]}")
        A(f"{MFMA} {O[j]}, {vf[4:8]}, {P[4:8]}, {O[j]}")
    fb_loop(f"L_{N}_fbpv", body_pv, True)
    A("s_nop 11")
    for j in range(3):
        A(f"v_add_u32 {vRw}, s{RED[j]}, {vL16}")
        for q in range(4): A(f"ds_write_b128 {vRw}, {O[j][4*q:4*q+4]} offset:{j*4096 + q*1024}")
    A("s_waitcnt lgkmcnt(0)")
    A("s_barrier")
    reduce_norm(False)
    A(f"s_cmp_eq_u32 s{OK}, 1")
    A(f"s_cbranch_scc1 L_{N}_tail")
    norm_store(O[3], t1, OAS)
    A(f"s_branch L_{N}_tail")
    return A.text(), kernel_desc(name, 256, 256, 102 if stamps else 72), (V.high, AG.high)

if __name__ == "__main__":
    t, d, n = gen()
    print("kf", n, "hazards", check_hazards(t), "lines", t.count("\n"))
```

```python
import build as B, k1, k2, k2b, kf
def make(kind, stamps=False, **kw):
    if kind in ("f", "fs"):
        nm = "gated_mix__mha_block__linear_attn_block__prompt_kernel"
        t, d, _ = kf.gen(stamps=stamps, **kw.get("k2", {}))
        if kind == "fs": return B.assemble_single(nm, t, d, 256, 256, kf.LDS)
        return B.assemble([(nm, t, d, 256, 256, kf.LDS)])
    if kind == "v2":
        a = dict(stsc="sc1", pf_code=("attn_kernel", "L_attn_kernel_end")); a.update(kw.get("k1", {}))
        t1, d1, _ = k1.gen_k1(stamps=stamps, **a)
        t2, d2, _ = k2b.gen_k2(stamps=stamps, **kw.get("k2", {}))
        k2.gen_k2.names = getattr(k2b.gen_k2, "names", None)
        return B.assemble([("qkv_kernel", t1, d1, 256, 256, 163840), ("attn_kernel", t2, d2, 256, 256, k2b.K2_LDS)])
    t1, d1, _ = k1.gen_k1(stamps=stamps, **kw.get("k1", {}))
    ks = [("qkv_kernel", t1, d1, 256, 256, 163840)]
    t2, d2, _ = k2.gen_k2(fused=(kind == "two"), stamps=stamps, **kw.get("k2", {}))
    ks.append(("attn_kernel", t2, d2, 256, 256, k2.K2_LDS))
    if kind == "three":
        t3, d3, _ = k2.gen_k3()
        ks.append(("proj_kernel", t3, d3, 224, 256, 65536))
    return B.assemble(ks)
if __name__ == "__main__":
    import sys
    kind = sys.argv[1]; out = sys.argv[2]
    open(out, "w").write(make(kind))
```

```python
from common import *
from collections import deque
from pads import add_pads

L_RED, L_WO, WO_IMG = 0, 49152, 57344
L_KVX, L_MAX = 8192, 8192
LDS = 163840
SLOT = 32768
L_P = 2 * SLOT
SPIN = 0x40000
ROLES = [2, 3, 0, 1, 0, 2, 1, 3, 2, 0, 3, 1, 2, 0, 3, 1]
ROLES1 = [0, 3, 2, 1, 2, 0, 3, 1, 0, 2, 1, 3, 2, 3, 0, 1]
role_bits = lambda R: sum(r << (2 * h) for h, r in enumerate(R))
TAGC = 0x9E3779B1

def gen(name="gated_mix__mha_block__linear_attn_block__prompt_kernel", bb=17, poll_at=48, force_fallback=False, NB=4, QM=3, stamps=False,
        fine=False, pace=2, flag_lag=9, rot=2, bchk=5, outsc="", aload_at=24, wo_at=17, roles=1, pbef=1, pfq=2, pf_at=10, nfirst=3, late_poll=18, poll1=6, qpoll=5, pkv=8, pads=True, hb=2, merge=False, clk=False, kvp_hi=True, skip=("kvpub", "Bdone", "kvseen")):
    A = Asm()
    V = Alloc("v", 1, 256); AG = Alloc("a", 0, 256)
    N = "f"
    sW, sO, sA, sB = 16, 20, 24, 28
    sX, sM = 4, 8; QWB, FLQ = 32, 33
    W_, H, QB, R_, T0, T1, T2 = 36, 37, 38, 39, 40, 41, 42
    J_, KC, XB, WB_, A_, B_, LX, LM, RB, C0, KC0, EPS, FLP = 43, 44, 45, 46, 47, 48, 49, 50, 51, 52, 53, 54, 55
    ST0, ST1, IDX, OUTA, WL, OAS, OBS, FLO = 56, 57, 58, 59, 60, 61, 62, 63
    WSP = 64; TAG = 67; WOS = [68, 69, 70, 71]; RED = [72, 73, 74]; PFP = 76
    KO, OK, CNT, DONE, TW = 43, 46, 49, 44, 45
    lane = V(); t0 = V(); t1 = V(); t2 = V(); t3 = V(); vL16 = V(); vKV = V(); vKP = V(); vOT = V(); vg = V(); vRw = V(); vRr = V()
    vfl = V(); vfa = V(); vfb = V(); vft = V(); vpf = V(); vKX = V(); vOut = V()
    vWo = V(4); vWr = V(6)
    tp = V(2, 2)
    big = V(136, 4)
    Q = [big[8*j:8*j+8] for j in range(4)]
    Sb = [big[32:48], big[48:64]]
    P = big[64:72]
    O = [big[72+16*j:88+16*j] for j in range(4)]
    stg = V(64, 4)
    pq = V(8, 4); obuf = V(8, 4)
    Xk = Reg("a", 144, 112)
    KVr = [AG(16, 4) for _ in range(NB)]
    assert NB <= 8
    oBf = Reg("a", 192, 64)
    acc = [[O[0], O[1]], [O[2], O[3]]]
    ob = [[big[0:8], big[8:16]], [big[16:24], big[64:72]]]
    accQ, accP = Sb
    Xf = [stg[0:4], stg[4:8]]; Wf = [stg[8:16], stg[16:24]]; ptmp = stg[24:32]
    vXo = stg[32:36]; vXt = stg[36:40]; vT = stg[40:42]; vP2 = stg[42]; vG = stg[43]; vdum = stg[47]; vEp = stg[48]; vPa = stg[44:46]; vPs = stg[46]; vfq = stg[49]; vP2b = stg[59]; vPk = stg[60:64]
    vXA, vXB, vM, vPw, vE0, vE1 = stg[50], stg[51], stg[52], stg[53], stg[54], stg[55]
    vQr = stg[56:59]
    A(kernel_head(name))
    ST = Stamps(A, stamps, 2)
    STc = lambda n: None if (fine or n in skip) else ST(n)
    A("s_cmp_ge_u32 s2, 256")
    A(f"s_cbranch_scc1 L_{N}_end")
    ST("rt0", True); ST("start")
    A(f"s_load_dwordx2 s[{WSP}:{WSP+1}], s[0:1], 72")
    A("s_load_dwordx8 s[4:11], s[0:1], 0")
    A("s_load_dwordx8 s[56:63], s[0:1], 32")
    A(f"v_lshrrev_b32 {t0}, 6, v0")
    A(f"v_and_b32 {lane}, 63, v0")
    A(f"v_readfirstlane_b32 s{W_}, {t0}")
    A("s_getpc_b64 s[14:15]")
    A.label(f"L_{N}_pc")
    A("s_lshr_b32 s3, s2, 3"); A("s_lshl_b32 s3, s3, 2"); A(f"s_add_u32 s3, s3, s{W_}"); A(f"s_lshl_b32 s{T0}, s3, 9")
    A(f"v_and_b32 {t0}, 3, {lane}"); A(f"v_lshl_add_u32 {t0}, {t0}, 7, s{T0}"); A(f"v_min_u32 {t0}, L_{N}_end-L_{N}_pc, {t0}")
    A(f"global_load_dword {vdum}, {t0}, s[14:15]")
    if hb == 2:
        A(f"s_and_b32 s{J_}, s2, 3")
        A(f"s_lshr_b32 s{T1}, s2, 5"); A(f"s_bfe_u32 s{QB}, s2, 0x10002"); A(f"s_lshl_b32 s{QB}, s{QB}, 3"); A(f"s_add_u32 s{QB}, s{QB}, s{T1}")
    else:
        A(f"s_and_b32 s{J_}, s2, 1"); A(f"s_lshl_b32 s{J_}, s{J_}, 1"); A(f"s_bfe_u32 s{T0}, s2, 0x10005"); A(f"s_add_u32 s{J_}, s{J_}, s{T0}")
        A(f"s_lshr_b32 s{T1}, s2, 6"); A(f"s_bfe_u32 s{QB}, s2, 0x20001"); A(f"s_lshl_b32 s{QB}, s{QB}, 2"); A(f"s_add_u32 s{QB}, s{QB}, s{T1}")
    A(f"s_bfe_u32 s{T0}, s2, 0x20003"); A(f"s_lshl_b32 s{H}, s{J_}, 2"); A(f"s_add_u32 s{H}, s{H}, s{T0}")
    A(f"s_lshl_b32 s{T0}, s{H}, 1"); A(f"s_lshr_b32 s{R_}, {hx(role_bits([ROLES, ROLES1][roles]))}, s{T0}"); A(f"s_and_b32 s{R_}, s{R_}, 3")
    if rot == 2:
        if hb == 2:
            A(f"s_bfe_u32 s{T0}, s2, 0x20003"); A(f"s_lshr_b32 s{T1}, s2, 5"); A(f"s_lshl_b32 s{T1}, s{T1}, 1"); A(f"s_add_u32 s{T0}, s{T0}, s{T1}"); A(f"s_lshl_b32 s{T0}, s{T0}, 1")
        else:
            A(f"s_bfe_u32 s{T0}, s2, 0x30003"); A(f"s_lshr_b32 s{T1}, s2, 6"); A(f"s_lshl_b32 s{T1}, s{T1}, 1"); A(f"s_add_u32 s{T0}, s{T0}, s{T1}")
        A(f"s_and_b32 s{T1}, s2, 7"); A(f"s_add_u32 s{T0}, s{T0}, s{T1}")
        A(f"s_mul_i32 s{T1}, s{T0}, 37"); A(f"s_lshr_b32 s{T1}, s{T1}, 8"); A(f"s_mul_i32 s{T1}, s{T1}, 7"); A(f"s_sub_u32 s{KC}, s{T0}, s{T1}")
    elif rot:
        A(f"s_mul_i32 s{T1}, s2, 9363"); A(f"s_lshr_b32 s{T1}, s{T1}, 16"); A(f"s_mul_i32 s{T1}, s{T1}, 7"); A(f"s_sub_u32 s{KC}, s2, s{T1}")
    else: A(f"s_mov_b32 s{KC}, 0")
    A(f"s_mov_b32 s{KC0}, s{KC}")
    A(f"s_and_b32 s{A_}, s{W_}, 1"); A(f"s_lshr_b32 s{B_}, s{W_}, 1"); A(f"s_lshr_b32 s{RB}, s{R_}, 1")
    A(f"s_lshl_b32 s{T0}, s{QB}, 2"); A(f"s_add_u32 s{T0}, s{T0}, s{W_}"); A(f"s_mul_i32 s{XB}, s{T0}, {32*XROW}")
    A(f"s_mul_i32 s{WB_}, s{W_}, {16*WROW}")
    A(f"s_lshl_b32 s{LX}, s{W_}, 12"); A(f"s_add_u32 s{LM}, s{LX}, 16384")
    A(f"v_lshrrev_b32 {t0}, 3, {lane}"); A(f"v_and_b32 {t1}, 7, {lane}"); A(f"v_xor_b32 {t2}, {t0}, {t1}"); A(f"v_lshlrev_b32 {t2}, 4, {t2}")
    A(f"v_mul_u32_u24 {t3}, {XROW}, {t0}"); A(f"v_add_u32 {vXA}, {t2}, {t3}"); A(f"v_xor_b32 {vXB}, 16, {vXA}")
    A(f"s_lshl_b32 s{T0}, s{J_}, 1"); A(f"s_and_b32 s{T1}, s{R_}, 1"); A(f"s_add_u32 s{T0}, s{T0}, s{T1}"); A(f"s_mul_i32 s{T0}, s{T0}, 112")
    A(f"s_add_u32 s{T0}, s{T0}, 896")
    A(f"s_add_u32 s{T1}, s{R_}, 1"); A(f"s_mul_i32 s{T1}, s{T1}, 896"); A(f"s_mul_i32 s{T2}, s{J_}, 224"); A(f"s_add_u32 s{T1}, s{T1}, s{T2}")
    A(f"s_cmp_lt_u32 s{R_}, 2")
    A(f"s_cselect_b32 s{T0}, s{T1}, s{T0}"); A(f"s_cselect_b32 s{T1}, 4, 3"); A(f"s_cselect_b32 s{T2}, 15, 7"); A(f"s_cselect_b32 s{EPS}, 13, 6")
    A(f"v_lshrrev_b32 {t0}, 4, {lane}"); A(f"v_lshlrev_b32 {t1}, 2, {t0}"); A(f"v_sub_u32 {t1}, {lane}, {t1}"); A(f"v_and_b32 {t1}, 15, {t1}")
    A(f"v_lshrrev_b32 {t2}, s{T1}, {t1}"); A(f"v_mul_u32_u24 {t2}, 896, {t2}"); A(f"v_and_b32 {t1}, s{T2}, {t1}"); A(f"v_min_u32 {t1}, s{EPS}, {t1}")
    A(f"v_lshl_add_u32 {t1}, {t1}, 4, {t2}"); A(f"v_mul_u32_u24 {t3}, {WROW}, {t0}"); A(f"v_add3_u32 {vM}, {t1}, {t3}, s{T0}")
    A("s_waitcnt lgkmcnt(0)")
    A(f"s_mov_b32 s{sA}, s8"); A(f"s_mov_b32 s{sA+1}, s9"); A("s_mov_b32 s12, s6"); A("s_mov_b32 s13, s7")
    A(f"s_cmp_lt_u32 s{R_}, 2")
    A(f"s_cselect_b32 s{sM}, s6, s56"); A(f"s_cselect_b32 s{sM+1}, s7, s57"); A(f"s_mov_b32 s{sM+2}, {hx(W_BYTES)}"); A(f"s_mov_b32 s{sM+3}, 0x20000")
    A(f"s_mov_b32 s{sX+2}, {hx(X_BYTES)}"); A(f"s_mov_b32 s{sX+3}, 0x20000")
    vm = VmQ(); vm.issue("pf")
    def dma_groups(i):
        sl = (i % 5) * SLOT
        g = []
        for blk in range(4):
            pre = [f"s_lshl_b32 s{T0}, s{KC}, 7", f"s_add_u32 m0, s{LX}, {sl}", f"s_add_u32 s{T0}, s{T0}, s{XB}"] if blk == 0 else [f"s_add_u32 s{T0}, s{T0}, 6144"]
            g.append(pre + [f"buffer_load_dwordx4 {vXA if blk < 2 else vXB}, s[{sX}:{sX+3}], s{T0} offen offset:{blk*1024} lds"])
        for q in range(4):
            pre = [f"s_mul_i32 s{T1}, s{KC}, {64*WROW}", f"s_add_u32 m0, s{LM}, {sl}", f"s_add_u32 s{T1}, s{T1}, s{WB_}"] if q == 0 else [f"s_add_u32 s{T1}, s{T1}, {4*WROW-1024}"]
            post = [f"s_add_u32 s{KC}, s{KC}, 1", f"s_cmp_eq_u32 s{KC}, 7", f"s_cselect_b32 s{KC}, 0, s{KC}"] if q == 3 else []
            g.append(pre + [f"buffer_load_dwordx4 {vM}, s[{sM}:{sM+3}], s{T1} offen offset:{q*1024} lds"] + post)
        return g
    def p_groups(i):
        return [[f"s_lshl_b32 s{T1}, s{KC}, 13", f"s_lshr_b32 s{T0}, s{LX}, 1", f"s_add_u32 m0, s{T0}, {L_P + i*8192}", f"s_add_u32 s{T1}, s{T1}, s{QWB}",
                 f"buffer_load_dwordx4 {vL16}, s[{sW}:{sW+3}], s{T1} offen sc1 lds"],
                [f"s_add_u32 s{KC}, s{KC}, 1", f"buffer_load_dwordx4 {vL16}, s[{sW}:{sW+3}], s{T1} offen offset:1024 sc1 lds",
                 f"s_cmp_eq_u32 s{KC}, 7", f"s_cselect_b32 s{KC}, 0, s{KC}"]]
    for x in dma_groups(0):
        for y in x: A(y)
        vm.issue("c0")
    A(f"s_mov_b32 s{sA+2}, {hx(WO_BYTES)}"); A(f"s_mov_b32 s{sA+3}, 0x20000")
    srd(A, sW, f"s{WSP}", f"s{WSP+1}", WS_USED); srd(A, sB, "s58", "s59", WO_BYTES); srd(A, sO, "s62", "s63", OUT_BYTES)
    A(f"v_lshlrev_b32 {vL16}, 4, {lane}")
    A(f"s_mul_i32 s{T0}, s{QB}, 28"); A(f"s_mul_i32 s{T1}, s{W_}, 7"); A(f"s_add_u32 s{T0}, s{T0}, s{T1}")
    A(f"v_lshrrev_b32 {t0}, 3, {lane}"); A(f"v_min_u32 {t0}, 6, {t0}"); A(f"v_add_u32 {t0}, s{T0}, {t0}")
    A(f"v_and_b32 {t1}, 3, {lane}"); A(f"v_mul_u32_u24 {t2}, {WROW}, {t0}"); A(f"v_lshl_add_u32 {t2}, {t1}, 4, {t2}")
    A(f"s_mul_i32 s{T1}, s{H}, 56"); A(f"v_add_u32 {t2}, s{T1}, {t2}")
    A(f"v_and_b32 {t3}, 4, {lane}"); A(f"v_cmp_eq_u32 vcc, 0, {t3}")
    A(f"v_mov_b32 {vPa[0]}, s56"); A(f"v_mov_b32 {vPa[1]}, s57"); A(f"v_mov_b32 {vPk[0]}, s12"); A(f"v_mov_b32 {vPk[1]}, s13")
    A(f"v_cndmask_b32 {vPa[0]}, {vPa[0]}, {vPk[0]}, vcc"); A(f"v_cndmask_b32 {vPa[1]}, {vPa[1]}, {vPk[1]}, vcc")
    A(f"v_add_co_u32 {vPa[0]}, vcc, {vPa[0]}, {t2}"); A("s_nop 1"); A(f"v_addc_co_u32 {vPa[1]}, vcc, 0, {vPa[1]}, vcc")
    A(f"global_load_dwordx4 {vPk}, {vPa}, off"); vm.issue("g")
    A(f"v_lshlrev_b32 {t2}, 1, {t0}")
    A(f"global_load_ushort {vG}, {t2}, s[60:61]"); vm.issue("g")
    A(f"v_lshlrev_b32 {t2}, 1, {t0}"); A(f"v_and_b32 {t2}, 4, {t2}"); A(f"v_and_b32 {t1}, 7, {lane}"); A(f"v_xor_b32 {t1}, {t1}, {t2}")
    A(f"v_lshlrev_b32 {t1}, 4, {t1}"); A(f"v_lshl_add_u32 {t1}, {t0}, 7, {t1}")
    A(f"s_mul_i32 s{T0}, s{H}, 57344"); A(f"s_add_u32 s{T0}, s{T0}, {hx(WS_QW)}"); A(f"v_add_u32 {vPs}, s{T0}, {t1}")
    A(f"s_lshl_b32 s{T1}, s{W_}, 11"); A(f"s_add_u32 s{QWB}, s{T0}, s{T1}")
    A(f"s_lshl_b32 s{T0}, s{H}, 11"); A(f"s_add_u32 s{T0}, s{T0}, {hx(WS_FQ)}"); A(f"v_and_b32 {t1}, 15, {lane}"); A(f"v_lshl_add_u32 {vfq}, {t1}, 7, s{T0}")
    A(f"s_lshl_b32 s{T1}, s{QB}, 7"); A(f"s_add_u32 s{FLQ}, s{T0}, s{T1}")
    A(f"v_mov_b32 {t0}, {hx(WS_EP)}")
    A(f"buffer_load_dword {vEp}, {t0}, s[{sW}:{sW+3}], 0 offen sc1"); vm.issue("g")
    A(f"v_and_b32 {t0}, 7, {lane}"); A(f"v_bfe_u32 {t1}, {lane}, 3, 2"); A(f"v_lshrrev_b32 {t2}, 5, {lane}"); A(f"v_xor_b32 {t2}, {t2}, {t0}")
    A(f"v_lshrrev_b32 {t3}, 1, {t1}"); A(f"v_xor_b32 {t2}, {t2}, {t3}"); A(f"v_lshlrev_b32 {t2}, 4, {t2}")
    A(f"v_lshl_add_u32 {t2}, {t0}, 7, {t2}"); A(f"v_lshl_add_u32 {t2}, {t1}, 10, {t2}")
    A(f"v_add_u32 {vXo[0]}, s{LX}, {t2}")
    for j in range(1, 4): A(f"v_xor_b32 {vXo[j]}, {32*j}, {vXo[0]}")
    for j in range(4): A(f"v_xor_b32 {vXt[j]}, 0x1000, {vXo[j]}")
    A(f"v_bfe_u32 {t0}, {lane}, 2, 2"); A(f"v_and_b32 {t1}, 3, {lane}"); A(f"v_lshlrev_b32 {t1}, 3, {t1}")
    A(f"v_and_b32 {t2}, 16, {lane}"); A(f"v_lshl_add_u32 {t1}, {t2}, 1, {t1}")
    A(f"v_lshrrev_b32 {t2}, 5, {lane}"); A(f"v_lshl_add_u32 {t2}, {t2}, 3, {t0}")
    A(f"s_mul_i32 s{T0}, s{A_}, 56"); A(f"s_lshl_b32 s{T1}, s{T0}, 1")
    A(f"s_cmp_lt_u32 s{R_}, 2")
    A(f"s_cselect_b32 s{T1}, s{T1}, s{T0}"); A(f"s_cselect_b32 s{T0}, 56, 0x80"); A(f"s_add_u32 s{T0}, s{T0}, s{T1}")
    A(f"v_lshl_add_u32 {t3}, {t0}, 6, {t1}")
    for t, sreg in ((0, T1), (1, T0)):
        A(f"v_add_u32 {vT[t]}, s{sreg}, {t3}"); A(f"v_and_b32 {vT[t]}, 0xff, {vT[t]}"); A(f"v_lshl_add_u32 {vT[t]}, {t2}, 8, {vT[t]}"); A(f"v_add_u32 {vT[t]}, 16384, {vT[t]}")
    A(f"v_lshlrev_b32 {t3}, 5, {t0}"); A(f"v_and_b32 {t3}, 64, {t3}"); A(f"v_add_u32 {t3}, {t3}, {t1}"); A(f"v_lshl_add_u32 {t3}, {t2}, 7, {t3}")
    A(f"v_add_u32 {vP2}, {L_P}, {t3}"); A(f"v_xor_b32 {vP2b}, 64, {vP2}")
    for x in dma_groups(1):
        for y in x: A(y)
        vm.issue("c1")
    A("s_cmp_lt_u32 s3, 64")
    A(f"s_cselect_b32 s{PFP}, s{sA}, s58"); A(f"s_cselect_b32 s{PFP+1}, s{sA+1}, s59")
    A(f"s_and_b32 s{T0}, s3, 63"); A(f"s_mul_i32 s{T0}, s{T0}, 49"); A(f"v_min_u32 {vpf}, 12, {lane}"); A(f"v_add_lshl_u32 {vpf}, {vpf}, s{T0}, 7")
    A(f"s_lshl_b32 s{T0}, s{J_}, 1"); A(f"s_add_u32 s{T0}, s{T0}, s{A_}"); A(f"s_lshl_b32 s{T0}, s{T0}, 5"); A(f"s_add_u32 s{T0}, s{T0}, s{QB}")
    A(f"s_lshl_b32 s{T0}, s{T0}, 2"); A(f"s_add_u32 s{T0}, s{T0}, s{W_}"); A(f"s_lshl_b32 s{ST0}, s{T0}, 12"); A(f"s_xor_b32 s{ST1}, s{ST0}, 0x1000")
    A(f"s_lshl_b32 s{T0}, s{J_}, 1"); A(f"s_and_b32 s{T1}, s{R_}, 1"); A(f"s_add_u32 s{T0}, s{T0}, s{T1}")
    A(f"s_lshl_b32 s{T1}, s{T0}, 4"); A(f"s_add_u32 s{T1}, s{T1}, s{QB}"); A(f"s_lshl_b32 s{T1}, s{T1}, 7")
    A(f"s_lshl_b32 s{T2}, s{RB}, 14"); A(f"s_add_u32 s{T1}, s{T1}, s{T2}"); A(f"s_add_u32 s{FLP}, s{T1}, {hx(WS_FKV)}")
    assert WS_FB == WS_FKV + 0x4000
    A(f"s_lshl_b32 s{T0}, s{T0}, 1"); A(f"s_add_u32 s{T0}, s{T0}, s{A_}"); A(f"s_lshl_b32 s{T0}, s{T0}, 1"); A(f"s_add_u32 s{T0}, s{T0}, s{B_}")
    A(f"s_lshl_b32 s{T0}, s{T0}, 5"); A(f"s_add_u32 s{T0}, s{T0}, s{QB}"); A(f"s_lshl_b32 s{T0}, s{T0}, 10"); A(f"s_add_u32 s{T0}, s{T0}, {hx(WS_KVP)}"); A(f"s_add_u32 s{T1}, s{T0}, 16384")
    A(f"s_cmp_eq_u32 s{RB}, 1"); A(f"s_cselect_b32 s{ST0}, s{T0}, s{ST0}"); A(f"s_cselect_b32 s{ST1}, s{T1}, s{ST1}")
    A(f"s_lshl_b32 s{T0}, s{W_}, 11"); A(f"v_add_u32 {vRw}, s{T0}, {vL16}"); A(f"v_add_u32 {vE0}, {4*SLOT}, {vRw}"); A(f"v_xor_b32 {vE1}, 0x1000, {vE0}")
    for j in range(3):
        A(f"s_add_u32 s{T1}, s{W_}, {j+1}"); A(f"s_and_b32 s{T1}, s{T1}, 3"); A(f"s_mul_i32 s{RED[j]}, s{T1}, 12288")
        A(f"s_lshl_b32 s{T1}, s{T1}, 11"); A(f"v_add_u32 {vQr[j]}, s{T1}, {vL16}")
    A(f"s_lshl_b32 s{T0}, s{H}, 2"); A(f"s_add_u32 s{T0}, s{T0}, s{W_}"); A(f"s_lshl_b32 s{T1}, s{T0}, 16"); A(f"s_add_u32 s{T1}, s{T1}, 4096"); A(f"v_add_u32 {vKV}, s{T1}, {vL16}")
    A(f"s_lshl_b32 s{T1}, s{T0}, 14"); A(f"s_add_u32 s{T1}, s{T1}, {hx(WS_KVP + 4096)}"); A(f"v_add_u32 {vKP}, s{T1}, {vL16}")
    A(f"s_lshl_b32 s{T0}, s{J_}, 3"); A(f"s_add_u32 s{T0}, s{T0}, s{W_}"); A(f"s_lshl_b32 s{T0}, s{T0}, 9"); A(f"s_add_u32 s{T0}, s{T0}, {hx(WS_FKV)}")
    A(f"v_and_b32 {t0}, 3, {lane}"); A(f"v_and_b32 {t1}, 4, {lane}"); A(f"v_lshlrev_b32 {t1}, 9, {t1}"); A(f"v_lshl_add_u32 {t0}, {t0}, 7, {t1}"); A(f"v_add_u32 {vfa}, s{T0}, {t0}")
    A(f"s_lshr_b32 s{T1}, s{H}, 1"); A(f"s_lshl_b32 s{T1}, s{T1}, 11"); A(f"s_add_u32 s{T1}, s{T1}, {hx(WS_FB)}")
    A(f"v_and_b32 {t0}, 15, {lane}"); A(f"v_lshl_add_u32 {vfb}, {t0}, 7, s{T1}")
    A(f"s_lshl_b32 s{T0}, s{QB}, 2"); A(f"s_add_u32 s{T0}, s{T0}, s{W_}"); A(f"s_lshl_b32 s{T0}, s{T0}, 4"); A(f"s_add_u32 s{T0}, s{T0}, s{H}")
    A(f"s_lshl_b32 s{T1}, s{T0}, 7"); A(f"s_add_u32 s{FLO}, s{T1}, {hx(WS_FO)}")
    A(f"s_lshl_b32 s{T0}, s{T0}, 11"); A(f"s_add_u32 s{OAS}, s{T0}, {hx(WS_OA)}"); A(f"s_add_u32 s{OBS}, s{T0}, {hx(WS_OB)}")
    A(f"s_lshl_b32 s{T0}, s{B_}, 10"); A(f"s_lshl_b32 s{T1}, s{A_}, 3"); A(f"s_add_u32 s{T0}, s{T0}, s{T1}"); A(f"s_add_u32 s{T0}, s{T0}, {L_KVX}"); A(f"v_add_u32 {vKX}, s{T0}, {vL16}")
    A(f"s_mul_i32 s{T1}, s{W_}, 12288"); A(f"v_add_u32 {vRr}, s{T1}, {vL16}")
    A(f"s_lshr_b32 s{IDX}, s2, 3")
    A(f"s_mul_i32 s{T0}, s{IDX}, 37"); A(f"s_lshr_b32 s{T0}, s{T0}, 8")
    A(f"s_mul_i32 s{T2}, s{T0}, 7"); A(f"s_sub_u32 s{T2}, s{IDX}, s{T2}")
    A(f"s_min_u32 s{T0}, s{T0}, 3")
    A(f"s_and_b32 s{T1}, s2, 7"); A(f"s_lshl_b32 s{T1}, s{T1}, 2"); A(f"s_add_u32 s{T0}, s{T0}, s{T1}")
    A(f"s_lshl_b32 s{T0}, s{T0}, 1"); A(f"s_add_u32 s{T0}, s{T0}, s{A_}")
    A(f"s_mul_i32 s{OUTA}, s{T0}, {32*XROW}"); A(f"s_lshl_b32 s{T1}, s{T2}, 1"); A(f"s_add_u32 s{T1}, s{T1}, s{B_}"); A(f"s_lshl_b32 s{T1}, s{T1}, 6"); A(f"s_add_u32 s{OUTA}, s{OUTA}, s{T1}")
    A(f"s_lshl_b32 s{T0}, s{T0}, 1"); A(f"s_add_u32 s{T0}, s{T0}, s{B_}")
    A(f"s_lshl_b32 s{T1}, s{T0}, 14"); A(f"s_add_u32 s{T1}, s{T1}, {hx(WS_OB + 4096)}"); A(f"v_add_u32 {vOT}, s{T1}, {vL16}")
    A(f"s_lshl_b32 s{T1}, s{T0}, 10"); A(f"s_add_u32 s{T1}, s{T1}, {hx(WS_FO)}"); A(f"v_and_b32 {t0}, 7, {lane}"); A(f"v_lshl_add_u32 {vft}, {t0}, 7, s{T1}")
    A(f"v_and_b32 {t0}, 31, {lane}"); A(f"v_mul_u32_u24 {t0}, {XROW}, {t0}"); A(f"v_lshrrev_b32 {t1}, 5, {lane}"); A(f"v_lshl_add_u32 {vOut}, {t1}, 4, {t0}")
    A(f"v_lshrrev_b32 {t0}, 3, {lane}"); A(f"v_mul_u32_u24 {t0}, {XROW}, {t0}")
    A(f"v_lshrrev_b32 {t1}, 2, {lane}"); A(f"v_and_b32 {t1}, 4, {t1}"); A(f"v_and_b32 {t2}, 7, {lane}"); A(f"v_xor_b32 {t1}, {t1}, {t2}")
    A(f"v_lshl_add_u32 {t0}, {t1}, 4, {t0}"); A(f"s_lshl_b32 s{T0}, s{T2}, 7"); A(f"v_add_u32 {vWo[0]}, s{T0}, {t0}")
    for q_ in range(1, 4): A(f"v_add_u32 {vWo[q_]}, {q_*(8*XROW-1024)}, {vWo[0]}")
    A(f"s_mul_i32 s{WOS[0]}, s{W_}, {112*XROW}")
    for g in range(1, 4): A(f"s_add_u32 s{WOS[g]}, s{WOS[0]}, {g*32*XROW}")
    A(f"s_mul_i32 s{WL}, s{W_}, 14336")
    A(f"v_and_b32 {t1}, 3, {lane}"); A(f"v_lshlrev_b32 {t1}, 3, {t1}")
    A(f"v_and_b32 {t0}, 16, {lane}"); A(f"v_lshl_add_u32 {t1}, {t0}, 1, {t1}")
    A(f"v_and_b32 {t0}, 8, {lane}"); A(f"v_lshl_add_u32 {t1}, {t0}, 3, {t1}")
    A(f"s_lshl_b32 s{T0}, s{B_}, 6"); A(f"v_xor_b32 {t1}, s{T0}, {t1}")
    A(f"v_bfe_u32 {t0}, {lane}, 2, 2"); A(f"v_lshl_add_u32 {t1}, {t0}, 7, {t1}")
    A(f"s_mul_i32 s{T0}, s{B_}, 28672"); A(f"s_add_u32 s{T0}, s{T0}, {L_WO + WO_IMG}")
    A(f"v_add_u32 {vWr[4]}, s{T0}, {t1}"); A(f"v_xor_b32 {vWr[5]}, 64, {vWr[4]}")
    A(f"v_lshrrev_b32 {t0}, 5, {lane}"); A(f"v_lshl_add_u32 {vWr[2]}, {t0}, 9, {vWr[4]}"); A(f"v_xor_b32 {vWr[3]}, 64, {vWr[2]}")
    A(f"v_subrev_u32 {vWr[0]}, {WO_IMG}, {vWr[2]}"); A(f"v_subrev_u32 {vWr[1]}, {WO_IMG}, {vWr[3]}")
    for i in (6, 7): A(f"v_mov_b32 {Q[3][i]}, 0"); A(f"v_mov_b32 {pq[i]}, 0")
    A("s_mov_b32 s34, 0x07060100")
    A(";TOUCH")
    A(f"s_cmp_lg_u32 s{R_}, 0")
    A(f"s_cbranch_scc1 L_{N}_N")
    A(f"s_branch L_{N}_T")
    A(".p2align 12")
    A.label(f"L_{N}_T")

    def flag_store(sreg):
        return [f"v_lshlrev_b32 {t0}, 2, {lane}", f"v_mov_b32 {t1}, s{TAG}", "s_mov_b64 exec, 0xffffffff",
                f"buffer_store_dword {t1}, {t0}, s[{sW}:{sW+3}], s{sreg} offen sc1", "s_mov_b64 exec, -1"]
    dummy = f"buffer_load_dword {vEp}, {vfa}, s[{sX}:{sX+3}], 0 offen"
    fqld = f"buffer_load_dword {vfl}, {vfq}, s[{sW}:{sW+3}], 0 offen sc1"
    def spin(lbl, reload):
        A(f"s_mov_b32 s35, 0")
        A.label(f"L_{N}_{lbl}")
        A(f"v_cmp_ne_u32 vcc, s{TAG}, {vfl}")
        A(f"s_cbranch_vccz L_{N}_{lbl}_done")
        A(reload)
        A(f"s_add_u32 s35, s35, 1")
        A(f"s_cmp_lt_u32 s35, {SPIN}")
        A("s_waitcnt vmcnt(0)")
        A(f"s_cbranch_scc1 L_{N}_{lbl}")
        A.label(f"L_{N}_{lbl}_done")
    def reads(step, ks, buf):
        r = [[f"ds_read_b128 {Xk[4*step:4*step+4]}, {vXo[ks]}"], [f"ds_read_b128 {Xf[buf]}, {vXt[ks]}"]]
        for t in range(2):
            for half in range(2):
                r.append([f"ds_read_b64_tr_b16 {Wf[buf][4*t+2*half:4*t+2*half+2]}, {vT[t]} offset:{ks*4096 + half*1024}"])
        return r
    def pass1(variant, prefill):
        q = VmQ(); q.q = list(vm.q)
        A(f"s_waitcnt vmcnt({q.wait_for(['c0', 'g'])})")
        A(f"v_readfirstlane_b32 s66, {vEp}")
        A("s_mov_b32 exec_lo, 0x80808080"); A("s_mov_b32 exec_hi, 0x80808080")
        A(f"v_perm_b32 {vPk[2]}, {vPk[2]}, {vG}, s{C0+0 if False else 34}")
        A("s_mov_b64 exec, -1")
        A(f"buffer_store_dwordx4 {vPk}, {vPs}, s[{sW}:{sW+3}], 0 offen sc1"); q.issue("pk")
        A(f"s_add_u32 s{TAG}, s66, {hx(TAGC)}")
        if stamps and not fine: ST.n = 2; ST.names = ST.names[:2]
        STc("c0")
        A("s_barrier")
        for g in reads(0, 0, 0): A(g[0])
        step = 0
        pf = list(prefill)
        for i in range(7):
            dm = [(f"c{i+2}", x) for x in dma_groups(i + 2)] if i + 2 < 7 else []
            for ks in range(4):
                buf = step & 1
                m = []
                for t in range(2):
                    for rl in range(2):
                        x, w = (Xk[4*step:4*step+4] if rl == 0 else Xf[buf]), Wf[buf][4*t:4*t+4]
                        c = "0" if step == 0 else str(acc[rl][t])
                        m.append(f"{MFMA} {acc[rl][t]}, {w}, {x}, {c}" if variant == "T" else f"{MFMA} {acc[rl][t]}, {x}, {w}, {c}")
                A("s_waitcnt lgkmcnt(0)")
                d = dm[3*ks:3*ks+3] if ks < 2 else (dm[6:8] if ks == 2 else [])
                for tg, x in d: q.issue(tg)
                d = [x for tg, x in d] + [[], [], []]
                if ks < 3:
                    rd = reads(step + 1, ks + 1, buf ^ 1)
                    fill = [sum(rd[0:3], []), sum(rd[3:6], []) + d[0], d[1], d[2]]
                    for k in range(4):
                        for _ in range(2):
                            if pf: fill[k] = fill[k] + [pf.pop()]
                    if i == qpoll and ks == 2: fill[3] = fill[3] + [fqld]; q.issue("fqld")
                    interleave(A, m, fill, per=1)
                elif i < 6:
                    n = q.wait_for(f"c{i+1}")
                    delta = SLOT if (i + 1) % 5 else -4 * SLOT
                    upd = [f"v_add_u32 {x}, {hx(delta)}, {x}" for x in [vXo[0], vXt[0], vT[0], vT[1]] + [y[k] for k in range(1, 4) for y in (vXo, vXt)]]
                    rd = reads(step + 1, 0, buf ^ 1)
                    tg_ = []
                    if i == 1:
                        tg_ = [f"s_cmp_lg_u32 s{W_}, 0", f"s_cbranch_scc1 L_{N}_q0{variant}"] + flag_store(FLQ) + [f"s_branch L_{N}_q1{variant}", f"L_{N}_q0{variant}:", dummy, f"L_{N}_q1{variant}:"]
                        q.issue("fq")
                    fill = [[f"s_waitcnt vmcnt({n})", "s_barrier"] + upd[:4], sum(rd[0:6], []), upd[4:], tg_]
                    interleave(A, m, fill, per=1)
                else:
                    for x in m: A(x)
                step += 1
        assert not pf and q.q in ([], ['fqld'])
        STc("pass1")
        if clk: ST("rtP", True)
    def cvt_tile(rl, t, lo_, hi_):
        for i in range(lo_, hi_): A(f"v_cvt_pk_bf16_f32 {ob[rl][t][i]}, {acc[rl][t][2*i]}, {acc[rl][t][2*i+1]}")
    def phi(x, extra=None):
        def pop():
            if extra:
                for y in extra.pop(0): A(y)
        for g in range(0, 16, 8):
            pop()
            for i in range(8): A(f"v_mul_f32 {ptmp[i]}, s{T2}, {x[g+i]}")
            for i in range(8): A(f"v_exp_f32_e64 {ptmp[i]}, {ptmp[i]} clamp")
            pop()
            for i in range(8): A(f"v_max_f32 {x[g+i]}, s{EPS}, {x[g+i]}")
            for i in range(8): A(f"v_add_f32 {x[g+i]}, {x[g+i]}, {ptmp[i]}")
    kvld = f"buffer_load_dword {vfl}, {vfa}, s[{sW}:{sW+3}], 0 offen sc1"
    PG = [x for c in range(7) for x in p_groups(c)]
    def kv_epilogue(T):
        off = 0 if T else 2048
        if not T: A("s_mov_b32 exec_lo, 0xefffffff"); A("s_mov_b32 exec_hi, 0xefffffff"); A("s_nop 5")
        else: A("s_nop 8")
        for t in range(2):
            for rl in range(2):
                if T:
                    cvt_tile(rl, t, 0, 6); A("s_mov_b64 exec, 0xffffffff"); cvt_tile(rl, t, 6, 8)
                else: cvt_tile(rl, t, 0, 8)
                A("s_mov_b64 exec, -1")
                for st in range(2):
                    A(f"buffer_store_dwordx4 {ob[rl][t][4*st:4*st+4]}, {vL16}, s[{sW}:{sW+3}], s{[ST0, ST1][rl]} offen offset:{off+1024*st} sc1")
                if t == 0: A(f"s_add_u32 s{[ST0, ST1][rl]}, s{[ST0, ST1][rl]}, {64*4096}")
                if not T and (t, rl) != (1, 1): A("s_mov_b32 exec_lo, 0xefffffff"); A("s_mov_b32 exec_hi, 0xefffffff")

    pre = []
    for rl in range(2):
        for t in range(2): pre += [f"v_mov_b32 {ob[rl][t][6]}, {hx(ONES)}", f"v_mov_b32 {ob[rl][t][7]}, 0x3f80"]
    pass1("T", pre)
    kv_epilogue(True)
    A(f"s_branch L_{N}_kvpub")
    A(".p2align 12")
    A.label(f"L_{N}_N")
    A(f"s_cmp_eq_u32 s{R_}, 1")
    A(f"s_cselect_b32 s{C0}, {hx(ONES)}, 0")
    pre = []
    for rl in range(2):
        pre += [f"v_mov_b32 {ob[rl][0][i]}, s{C0}" for i in range(8)] + [f"v_mov_b32 {ob[rl][1][i]}, {hx(ONES)}" for i in range(8)]
    pass1("N", pre)
    A(f"s_cmp_lg_u32 s{R_}, 1")
    A(f"s_cbranch_scc1 L_{N}_B")
    kv_epilogue(False)
    A.label(f"L_{N}_kvpub")
    A(";PAD")
    def pub(lbl, cond):
        for x in cond: A(x)
        for x in flag_store(FLP): A(x)
        A(f"s_branch L_{N}_{lbl}1")
        A.label(f"L_{N}_{lbl}0")
        A(dummy)
        A.label(f"L_{N}_{lbl}1")
    A("s_waitcnt vmcnt(8)")
    spin("pollQa", fqld)
    for x in PG[:pkv]:
        for y in x: A(y)
    A(f"s_waitcnt vmcnt({pkv})")
    A("s_barrier")
    STc("kvpub")
    pub("kv", [f"s_cmp_lg_u32 s{W_}, 0", f"s_cbranch_scc1 L_{N}_kv0"])
    for x in PG[pkv:]:
        for y in x: A(y)
    A(f"s_waitcnt vmcnt({7 if pkv >= 8 else 6})")
    A("s_barrier")
    A(f"s_branch L_{N}_pass2")
    A.label(f"L_{N}_B")
    A(";PAD")
    A(f"s_mov_b32 s{T2}, {hx(f32bits(LOG2E))}"); A(f"s_mov_b32 s{EPS}, {hx(f32bits(1e-6))}")
    kvp = accQ
    A("s_waitcnt vmcnt(0)")
    spin("pollQb", fqld)
    pg = list(PG)
    for _ in range(2):
        for y in pg.pop(0): A(y)
    for rl in range(2):
        phi(acc[rl][0], [pg.pop(0) + pg.pop(0), pg.pop(0), pg.pop(0) + pg.pop(0), pg.pop(0)])
        A("s_mov_b32 exec_lo, 0xefffffff"); A("s_mov_b32 exec_hi, 0xefffffff")
        cvt_tile(rl, 1, 0, 8)
        A("s_mov_b32 exec_lo, 0x0fffffff"); A("s_mov_b32 exec_hi, 0x0fffffff")
        cvt_tile(rl, 0, 0, 8)
        A("s_mov_b64 exec, -1")
        A("s_nop 0")
        for st in range(2):
            A(f"{MFMA} {kvp}, {ob[rl][0][4*st:4*st+4]}, {ob[rl][1][4*st:4*st+4]}, {'0' if rl == 0 and st == 0 else kvp}")
    assert not pg
    A("s_waitcnt vmcnt(6)")
    A("s_nop 5")
    A(f"s_cmp_eq_u32 s{B_}, 1")
    A("s_nop 3")
    A(f"s_cbranch_scc1 L_{N}_b1")
    for b in range(2):
        if b == 1: A.label(f"L_{N}_b1")
        snd, keep = kvp[8*(1-b):8*(1-b)+8], kvp[8*b:8*b+8]
        A(f"ds_write_b128 {vE0}, {snd[0:4]}"); A(f"ds_write_b128 {vE0}, {snd[4:8]} offset:1024")
        A("s_waitcnt lgkmcnt(0)")
        A("s_barrier")
        A(f"ds_read_b128 {ptmp[0:4]}, {vE1}"); A(f"ds_read_b128 {ptmp[4:8]}, {vE1} offset:1024")
        A("s_waitcnt lgkmcnt(0)")
        for i in range(8): A(f"v_add_f32 {obuf[i]}, {keep[i]}, {ptmp[i]}")
        if b == 0: A(f"s_branch L_{N}_b2")
    A.label(f"L_{N}_b2")
    A(f"buffer_store_dwordx4 {obuf[0:4]}, {vL16}, s[{sW}:{sW+3}], s{ST0} offen sc1")
    A(f"buffer_store_dwordx4 {obuf[4:8]}, {vL16}, s[{sW}:{sW+3}], s{ST1} offen sc1")
    A.label(f"L_{N}_pass2")
    A(";PAD")
    STc("epi1")
    W3 = [stg[8:16], stg[16:24], stg[24:32]]
    def reads2(k):
        return [f"ds_read_b64_tr_b16 {W3[k%3][4*t+2*half:4*t+2*half+2]}, {[vP2, vP2b][t]} offset:{k*2048 + half*512}" for t in range(2) for half in range(2)]
    for x in reads2(0) + reads2(1): A(x)
    vm = VmQ(); issued = {}
    def emit(item):
        for x in item:
            if x.startswith("VM:"): vm.issue(x[3:]); issued[x[3:]] = issued.get(x[3:], 0) + 1
            elif x.startswith("WAIT:"):
                n = vm.wait_for(x[5:])
                if n is not None: A(f"s_waitcnt vmcnt({n})")
            elif x.startswith("SPIN:"):
                _, lbl, rl = x.split(":", 2); spin(lbl, rl)
            else: A(x)
    gl = lambda dst, va, off: f"global_load_dwordx4 {dst}, {va}, s[{WSP}:{WSP+1}] offset:{off} sc1"
    def ldk(n): return [[gl(KVr[n%NB][4*st:4*st+4], vKV, (n & 1)*4096 - 4096 + st*1024), f"VM:K{n}"] for st in range(2)]
    def ldv(n): return [[gl(KVr[n%NB][8+4*st:12+4*st], vKV, (n & 1)*4096 - 2048 + st*1024), f"VM:V{n}"] + ([f"v_add_u32 {vKV}, 0x2000, {vKV}"] if (n & 1 and st and n < 15) else []) for st in range(2)]
    first_kv = sum((ldk(n) + ldv(n) for n in range(nfirst)), [])
    def step2(k, extra=()):
        rd = reads2(k + 2) if k < 26 else []
        A(f"s_waitcnt lgkmcnt({4 if k < 27 else 0})")
        A(f"{MFMA} {accQ}, {W3[k%3][0:4]}, {Xk[4*k:4*k+4]}, {'0' if k == 0 else accQ}")
        for x in rd[:2]: A(x)
        A(f"{MFMA} {accP}, {W3[k%3][4:8]}, {Xk[4*k:4*k+4]}, {'0' if k == 0 else accP}")
        for x in extra:
            if not x.startswith("VM:"): A(x)
        for x in rd[2:]: A(x)
        if 15 <= k < 21: A(f"v_mov_b32 {obuf[k-15 if k < 19 else k-13]}, {-1 if k < 19 else 0}")
    for k in range(14): step2(k, [kvld] if k == poll1 else ())
    A("s_waitcnt vmcnt(0)"); A(f"v_cmp_ne_u32 vcc, s{TAG}, {vfl}"); A("s_barrier")
    A(f"s_cmp_eq_u32 s{RB}, 0"); A(f"s_cbranch_scc1 L_{N}_nofb"); A(f"s_cmp_lg_u32 s{W_}, 0"); A(f"s_cbranch_scc1 L_{N}_nofb")
    for x in flag_store(FLP): A(x)
    A.label(f"L_{N}_nofb")
    A(f"s_cbranch_vccnz L_{N}_late")
    A(f"s_mov_b32 s{DONE}, 1")
    fk = list(first_kv)
    for k in range(14, 28): step2(k, fk.pop(0) if fk else ())
    for it in fk:
        for x in it:
            if not x.startswith("VM:"): A(x)
    A(f"s_branch L_{N}_p2done")
    A.label(f"L_{N}_late")
    A(";PAD")
    A(f"s_mov_b32 s{DONE}, 0")
    for k in range(14, 28): step2(k, [kvld] if k == late_poll else ())
    A.label(f"L_{N}_p2done")
    A(";PAD")
    STc("pass2")
    A(f"s_mov_b32 s{T2}, {hx(f32bits(QSCALE))}")
    A("s_nop 9")
    for i in range(16): A(f"v_mul_f32 {accQ[i]}, s{T2}, {accQ[i]}")
    for i in range(6): A(f"v_cvt_pk_bf16_f32 {Q[3][i]}, {accQ[2*i]}, {accQ[2*i+1]}")
    A("s_mov_b64 exec, 0xffffffff")
    for i in (6, 7): A(f"v_cvt_pk_bf16_f32 {Q[3][i]}, {accQ[2*i]}, {accQ[2*i+1]}")
    A("s_mov_b64 exec, -1")
    A(f"ds_write_b128 {vRw}, {Q[3][0:4]}"); A(f"ds_write_b128 {vRw}, {Q[3][4:8]} offset:1024")
    A(f"s_cmp_eq_u32 s{DONE}, 1"); A(f"s_cbranch_scc1 L_{N}_havekv")
    A("s_waitcnt vmcnt(0)")
    spin("pollKV", kvld)
    for it in first_kv: emit(it)
    A.label(f"L_{N}_havekv")
    STc("kvseen")
    A(f"v_mov_b32 {t1}, {accP[12]}")
    A(f"s_mov_b32 s{T2}, {hx(f32bits(LOG2E))}"); A(f"s_mov_b32 s{EPS}, {hx(f32bits(1e-6))}")
    A(f"v_permlane32_swap_b32 {accP[12]}, {t1}")
    A(f"v_mul_f32 {t1}, {hx(f32bits(-LOG2E))}, {t1}"); A(f"v_exp_f32 {t1}, {t1}")
    A("s_waitcnt lgkmcnt(0)")
    A("s_barrier")
    for j in range(3):
        for st in range(2): A(f"ds_read_b128 {Q[j][4*st:4*st+4]}, {vQr[j]} offset:{st*1024}")
    A(f"v_add_f32 {t1}, 1.0, {t1}"); A(f"v_rcp_f32 {vg}, {t1}")
    phi(accP)
    for i in range(6): A(f"v_cvt_pk_bf16_f32 {pq[i]}, {accP[2*i]}, {accP[2*i+1]}")
    A("s_mov_b64 exec, 0xffffffff")
    for i in (6, 7): A(f"v_cvt_pk_bf16_f32 {pq[i]}, {accP[2*i]}, {accP[2*i+1]}")
    A("s_mov_b64 exec, -1")

    order = [(n, j) for n in range(0, 16 - QM) for j in range(4)] + [(n, j) for j in range(4) for n in range(16 - QM, 16)]
    firstO = set()
    def qk(t, st):
        n, j = order[t]
        return (f"{MFMA} {Sb[t&1]}, {KVr[n%NB][4*st:4*st+4]}, {Q[j][4*st:4*st+4]}, {'0' if st == 0 else Sb[t&1]}", [f"K{n}"])
    def pv(t, st):
        n, j = order[t]
        c = O[j] if j in firstO else "0"
        firstO.add(j)
        return (f"{MFMA} {O[j]}, {KVr[n%NB][8+4*st:12+4*st]}, {P[4*st:4*st+4]}, {c}", [f"V{n}"])
    ex = lambda t, i: f"v_exp_f32 {Sb[t&1][i]}, {Sb[t&1][i]}"
    cv = lambda t, i: f"v_cvt_pk_bf16_f32 {P[i]}, {Sb[t&1][2*i]}, {Sb[t&1][2*i+1]}"
    slots = []
    for t in range(64):
        slots.append((qk(t+1, 0) if t < 63 else None, [ex(t, i) for i in range(0, 4)]))
        slots.append((qk(t+1, 1) if t < 63 else None, [cv(t, 0), cv(t, 1)] + [ex(t, i) for i in range(4, 8)]))
        slots.append((pv(t-1, 1) if t > 0 else None, [cv(t, 2), cv(t, 3)] + [ex(t, i) for i in range(8, 12)]))
        slots.append((pv(t, 0), [cv(t, 4), cv(t, 5)] + [ex(t, i) for i in range(12, 16)] + [cv(t, 6), cv(t, 7)]))
    hi, lo, fix, mid = [], [], {}, {}
    def at(slot, items): fix.setdefault(slot, []).extend(items)
    lastK = {n: max(4*(t-1)+1 for t in range(64) if order[t][0] == n) for n in range(16)}
    lastV = {n: max(4*(t+1)+2 for t in range(64) if order[t][0] == n) for n in range(16)}
    for n in range(nfirst, 16):
        p = n - NB
        eK = max(lastK[p] if p >= 0 else 0, (n - NB + 1) * 16); eV = max(lastV[p] if p >= 0 else 0, eK)
        hi.append((eK, ldk(n))); hi.append((eV, ldv(n)))
    fbld = f"buffer_load_dword {vfl}, {vfb}, s[{sW}:{sW+3}], 0 offen sc1"
    hi.append(((bchk - 3) * 4, [[fbld, "VM:fbld"]]))
    lo.append((pf_at * 4 + 1, [[f"global_load_dword {t2}, {vpf}, s[{PFP}:{PFP+1}] offset:{p_*13*128 if p_ < 2 else 0}", "VM:pf"] + ([f"v_add_u32 {vpf}, {26*128}, {vpf}"] if p_ == 1 else []) +
                               ([f"v_add_u32 {vpf}, {10*128}, {vpf}"] if p_ == 2 else []) for p_ in range(4)]))
    lo.append((bchk * 4 + 2, [[f"buffer_store_dwordx4 {obuf[0:4]}, {vL16}, s[{sW}:{sW+3}], s{OAS} offen offset:{st*1024} sc1", "VM:ost"] for st in range(2)]))
    at(bchk * 4, ["CHK:fbld:1", "WAIT:fbld", f"SPIN:pollP:{fbld}"])
    def ld16(dst, va, tag):
        return [[gl(dst[4*b:4*b+4], va, (b % 8)*1024 - 4096), f"VM:{tag}"] + ([f"v_add_u32 {va}, 0x2000, {va}"] if b == 7 else []) for b in range(16)]
    fast = ld16(stg, vKP, "kvp")
    lo.append((bchk * 4 + 1, fast))
    wl = []
    for br, srd_ in ((0, sB), (1, sA)):
        for q in range(14):
            if q % 4 == 0: wl.append([f"s_add_u32 m0, s{WL}, {L_WO + br*WO_IMG + q*1024}"])
            wl.append([f"buffer_load_dwordx4 {vWo[q%4]}, s[{srd_}:{srd_+3}], s{WOS[q//4]} offen offset:{(q%4)*1024} lds", "VM:wo"])
    lo.append(((wo_at or bchk) * 4 + 3, wl))
    s0 = bb * 4
    adds = [f"v_add_f32 {stg[i]}, {stg[i]}, {stg[lvl+i]}" for lvl in (32, 16, 8, 4) for i in range(lvl)]
    at(s0, ["CHK:kvp:16", "WAIT:kvp"])
    for k in range(8): at(s0 + k, adds[8*k:8*k+8])
    at(s0 + 8, [f"v_cvt_pk_bf16_f32 {tp[0]}, {stg[0]}, {stg[1]}", f"v_cvt_pk_bf16_f32 {tp[1]}, {stg[2]}, {stg[3]}"])
    at(s0 + 10, [f"ds_write_b64 {vKX}, {tp}"])
    at(s0 + 12, ["s_waitcnt lgkmcnt(0)", "s_barrier"])
    at(s0 + 14, [f"ds_read_b128 {stg[4:8]}, {vL16} offset:{L_KVX}", f"ds_read_b128 {stg[8:12]}, {vL16} offset:{L_KVX+1024}"])
    num = stg[16:32]
    at(s0 + 18, ["s_waitcnt lgkmcnt(0)"])
    mid[s0 + 19] = f"{MFMA} {num}, {stg[4:8]}, {pq[0:4]}, 0"
    mid[s0 + 23] = f"{MFMA} {num}, {stg[8:12]}, {pq[4:8]}, {num}"
    at(s0 + 20, ["s_barrier"])
    s1 = s0 + 4
    at(s1 + 22, [f"v_mov_b32 {t1}, {num[12]}", f"v_sub_f32 {t3}, 1.0, {vg}"])
    at(s1 + 23, [f"v_permlane32_swap_b32 {num[12]}, {t1}", f"v_add_f32 {t1}, {hx(f32bits(1e-6))}, {t1}", f"v_rcp_f32 {t1}, {t1}"])
    at(s1 + 24, [f"v_mul_f32 {t1}, {t1}, {t3}"])
    for k in range(4): at(s1 + 24 + k, [f"v_mul_f32 {num[i]}, {t1}, {num[i]}" for i in range(4*k, 4*k+4)])
    cvo = lambda acc_, i: f"v_cvt_pk_bf16_f32 {obuf[i]}, {acc_[2*i]}, {acc_[2*i+1]}"
    at(s1 + 28, ["CHK:ost:2"] + [cvo(num, i) for i in range(6)] + ["s_mov_b64 exec, 0xffffffff", cvo(num, 6), cvo(num, 7), "s_mov_b64 exec, -1"])
    hi.append((s1 + 29, [[f"buffer_store_dwordx4 {obuf[4*st:4*st+4]}, {vL16}, s[{sW}:{sW+3}], s{OBS} offen offset:{1024*st} sc1", "VM:ost"] for st in range(2)]))
    at(s1 + 30 + 4*flag_lag, ["CHK:ost:4", "WAIT:ost"] + flag_store(FLO) + ["VM:fl"])
    flld = f"buffer_load_dword {vfl}, {vft}, s[{sW}:{sW+3}], 0 offen sc1"
    hi.append(((poll_at - 3) * 4, [[flld, "VM:flld"]]))
    at(poll_at * 4, ["CHK:flld:1", "WAIT:flld", f"SPIN:pollB:{flld}"])
    front = {poll_at * 4 + 1: ld16(oBf, vOT, "oB")}
    for j in range(3):
        tl = max(t for t in range(64) if order[t][1] == j)
        at((tl + 1) * 4 + 3, [f"v_add_u32 {vRw}, s{RED[j]}, {vL16}"])
        for q in range(4): at((tl + 1) * 4 + 4 + q, [f"ds_write_b128 {vRw}, {O[j][4*q:4*q+4]} offset:{j*4096 + q*1024}"])
        if j == 2:
            b_ = (tl + 1) * 4 + 8
            at(b_, ["s_waitcnt lgkmcnt(0)", "s_barrier"])
            rd = [f"ds_read_b128 {stg[16*jj+4*q:16*jj+4*q+4]}, {vRr} offset:{jj*4096 + q*1024}" for jj in range(3) for q in range(4)]
            for u in range(3): at(b_ + 1 + u, rd[4*u:4*u+4])
    hi.sort(key=lambda e: e[0]); lo.sort(key=lambda e: e[0])
    ph, pl = deque(), deque()

    A(f"s_waitcnt vmcnt({vm.wait_for('K0')}) lgkmcnt(0)"); A(qk(0, 0)[0]); A(qk(0, 1)[0])
    ST("first")
    if clk: ST("rtF", True)
    A("s_nop 10")
    lastvm = -99; gen.log = {}
    for i, (mf, valu) in enumerate(slots):
        if fine and i % 16 == 0 and (i // 16) in fine: ST(f"t{i//4}")
        while hi and hi[0][0] <= i: ph.extend(hi.pop(0)[1])
        while lo and lo[0][0] <= i: pl.extend(lo.pop(0)[1])
        if i in front: pl.extendleft(reversed(front.pop(i)))
        if mf is not None:
            for tg in mf[1]: assert issued.get(tg) == 2, (i, tg)
            n = vm.wait_for(mf[1])
            if n is not None: A(f"s_waitcnt vmcnt({n})")
            A(mf[0])
        fx = fix.pop(i, [])
        isvm = lambda it: any(x.startswith("VM:") for x in it)
        need = [tg for d_ in ((1, 2) if i % 2 == 0 else (1,)) if i + d_ < len(slots) and slots[i+d_][0] is not None for tg in slots[i+d_][0][1]]
        need = [tg for tg in need if tg in vm.q and issued.get(tg) == 2]
        if need:
            A(f"s_waitcnt vmcnt({vm.wait_for(need)})")
        elif any(not x.startswith(("v_", "CHK:")) for x in fx[:2]): pass
        else:
            for dq in (ph, pl):
                if dq and (not isvm(dq[0]) or (i - lastvm >= pace and (i % 2 == 1 or pace == 1 or i - lastvm > 2)) or (kvp_hi and pl and 'VM:kvp' in pl[0] and i % 4 != 0)):
                    it = dq.popleft()
                    if isvm(it): lastvm = i; gen.log[[x for x in it if x.startswith('VM:')][0][3:]] = i
                    emit(it); break
                if dq and dq is ph and pl and not isvm(pl[0]):
                    emit(pl.popleft()); break
                if dq: break
        for x in fx:
            if x.startswith("CHK:"):
                _, tg, c = x.split(":"); assert issued.get(tg) == int(c), (i, x, issued)
            else: emit([x])
        if i in mid:
            for x in valu[:4]: A(x)
            A(mid.pop(i))
            for x in valu[4:]: A(x)
        else:
            for x in valu: A(x)
    assert not hi and not lo and not fix and not mid and not ph, (hi, lo, fix, mid, ph)
    A("s_nop 1")
    A(pv(63, 1)[0])
    gen.leftover = len(pl)
    while pl: emit(pl.popleft())
    ST("loop")
    if clk: ST("rtL", True)

    def norm_store(acc_, gfac, base):
        for i in range(16): A(f"v_mul_f32 {acc_[i]}, {gfac}, {acc_[i]}")
        for i in range(4): A(cvo(acc_, i))
        A(f"buffer_store_dwordx4 {obuf[0:4]}, {vL16}, s[{sW}:{sW+3}], s{base} offen sc1")
        for i in (4, 5): A(cvo(acc_, i))
        A("s_mov_b64 exec, 0xffffffff")
        for i in (6, 7): A(cvo(acc_, i))
        A("s_mov_b64 exec, -1")
        A(f"buffer_store_dwordx4 {obuf[4:8]}, {vL16}, s[{sW}:{sW+3}], s{base} offen offset:1024 sc1")
    def reduce_norm(check):
        if not check:
            for j in range(3):
                for q in range(4): A(f"ds_read_b128 {stg[16*j+4*q:16*j+4*q+4]}, {vRr} offset:{j*4096 + q*1024}")
        A("s_waitcnt lgkmcnt(4)")
        for i in range(0, 16, 2): A(f"v_pk_add_f32 {stg[i:i+2]}, {stg[i:i+2]}, {stg[16+i:18+i]}")
        A("s_waitcnt lgkmcnt(0)")
        for i in range(0, 16, 2): A(f"v_pk_add_f32 {stg[i:i+2]}, {stg[i:i+2]}, {stg[32+i:34+i]}")
        for i in range(0, 16, 2): A(f"v_pk_add_f32 {O[3][i:i+2]}, {O[3][i:i+2]}, {stg[i:i+2]}")
        A(f"v_mov_b32 {t1}, {O[3][12]}")
        if check:
            A(f"v_pk_mul_f32 {tp}, {O[3][0:2]}, 0")
            for i in range(2, 16, 2): A(f"v_pk_fma_f32 {tp}, {O[3][i:i+2]}, 0, {tp}")
        else: A("s_nop 1")
        A(f"v_permlane32_swap_b32 {O[3][12]}, {t1}")
        if check:
            A(f"v_add_f32 {t2}, {tp[0]}, {tp[1]}")
            A(f"v_add_f32 {t2}, {t2}, {t1}")
            lo_, hi_ = (2.0**-60, 2.0**60) if not force_fallback else (2.0**30, 2.0**60)
            A(f"v_cmp_le_f32 vcc, {hx(f32bits(lo_))}, {t2}")
            A(f"s_mov_b32 s{T1}, {hx(f32bits(hi_))}")
            A(f"v_cmp_ge_f32 s[50:51], s{T1}, {t2}")
        A(f"v_rcp_f32 {t1}, {t1}")
        if check:
            A("s_and_b64 vcc, vcc, s[50:51]")
            A("s_cmp_eq_u64 vcc, -1")
            A(f"s_cselect_b32 s{OK}, 1, 0")
        else: A("s_nop 0")
        A(f"v_mul_f32 {t1}, {t1}, {vg}")
    reduce_norm(True)
    A(f"s_cbranch_scc0 L_{N}_vote")
    norm_store(O[3], t1, OAS)
    A.label(f"L_{N}_vote")
    STc("pub")
    A(f"v_mov_b32 {t1}, s{OK}"); A(f"v_and_b32 {t2}, 3, {lane}"); A(f"v_mul_u32_u24 {t2}, 12288, {t2}")
    A("s_mov_b64 exec, 1")
    A(f"ds_write_b32 {vRr}, {t1}")
    A("s_mov_b64 exec, -1")
    A("s_waitcnt vmcnt(2) lgkmcnt(0)")
    A("s_barrier")
    A(f"ds_read_b32 {t0}, {t2}")
    A("s_waitcnt lgkmcnt(0)")
    A(f"v_cmp_eq_u32 vcc, 0, {t0}")
    A(f"s_cbranch_vccnz L_{N}_fb")
    A.label(f"L_{N}_tail")
    A(f"s_cmp_ge_u32 s{IDX}, 28")
    A(f"s_cbranch_scc1 L_{N}_exit")
    def wo_reads(dst, br, k, c):
        hl, st = k >> 1, k & 1
        o = (28*hl + 16*st) * 128
        a2 = vWr[4 + c] if (br == 1 and k == 15) else vWr[2*br + c]
        return [f"ds_read_b64_tr_b16 {dst[0:2]}, {vWr[2*br + c]} offset:{o}", f"ds_read_b64_tr_b16 {dst[2:4]}, {a2} offset:{o+1024}"]
    accB = [stg[0:16], stg[16:32]]; accA = [big[64:80], big[80:96]]
    wt = [stg[32+4*i:36+4*i] for i in range(4)]
    seq = [(k, c) for k in range(16) for c in range(2)]
    oAf = big[0:64]
    A(f"v_add_u32 {vOT}, {hx(WS_OA - WS_OB - 0x2000)}, {vOT}"); A(f"v_add_u32 {t3}, 0x2000, {vOT}")
    A(f"s_mov_b32 s{CNT}, 0")
    def loadA():
        return [[gl(oAf[4*k:4*k+4], vOT if k < 8 else t3, (k % 8)*1024 - 4096)] for k in range(16)]
    la = loadA()
    for u in range(3):
        for x in wo_reads(wt[u], 0, *seq[u]): A(x)
    for u, (k, c) in enumerate(seq):
        for x in wo_reads(wt[(u+3) % 4], (u + 3) // 32, *seq[(u+3) % 32]): A(x)
        A("s_waitcnt lgkmcnt(6)")
        A(f"{MFMA} {accB[c]}, {wt[u % 4]}, {oBf[4*k:4*k+4]}, {'0' if k == 0 else accB[c]}")
        if u >= aload_at:
            for _ in range(2):
                if la:
                    for x in la.pop(0): A(x)
    while la:
        for x in la.pop(0): A(x)
    STc("Bdone")
    A("s_nop 1")
    la = loadA()
    def check(hl):
        x = oAf[8*hl:8*hl+8]
        return [f"s_waitcnt vmcnt({14 - 2*hl})", f"v_max3_u32 {t1}, {x[0]}, {x[1]}, {x[2]}", f"v_max3_u32 {t0}, {x[3]}, {x[4]}, {x[5]}",
                f"v_max3_u32 {t1}, {t1}, {x[6]}, {x[7]}", f"v_max_u32 {t1}, {t1}, {t0}", f"v_cmp_eq_u32 vcc, -1, {t1}"]
    for x in check(0): A(x)
    for hl in range(8):
        A(f"s_cbranch_vccnz L_{N}_r{hl}")
        A.label(f"L_{N}_g{hl}")
        for u in range(4*hl, 4*hl + 4):
            k, c = seq[u]
            if u + 3 < 32:
                for y in wo_reads(wt[(u+3) % 4], 1, *seq[u+3]): A(y)
            A(f"s_waitcnt lgkmcnt({2*min(31-u, 3)})")
            A(f"{MFMA} {accA[c]}, {wt[u % 4]}, {oAf[4*k:4*k+4]}, {accB[c] if k == 0 else accA[c]}")
            if hl < 7 and u % 4 == 2:
                for y in check(hl + 1)[:3]: A(y)
            if hl < 7 and u % 4 == 3:
                for y in check(hl + 1)[3:]: A(y)
    def retries():
        for hl in range(8):
            A.label(f"L_{N}_r{hl}")
            A(f"s_add_u32 s{CNT}, s{CNT}, 1")
            A(f"s_cmp_gt_u32 s{CNT}, {SPIN}")
            A(f"s_cbranch_scc1 L_{N}_g{hl}")
            for it in la[2*hl:]: A(it[0])
            for y in check(hl): A(y)
            A(f"s_cbranch_vccnz L_{N}_r{hl}")
            A(f"s_branch L_{N}_g{hl}")
    A.label(f"L_{N}_store")
    STc("Adone")
    A(f"s_xor_b32 s{T0}, s{W_}, 2"); A(f"s_mul_i32 s{T0}, s{T0}, 12288"); A(f"v_add_u32 {t2}, s{T0}, {vL16}")
    A("s_nop 8")
    for q in range(4): A(f"ds_write_b128 {vRr}, {accA[1][4*q:4*q+4]} offset:{4096 + q*1024}")
    A("s_waitcnt lgkmcnt(0)")
    A("s_barrier")
    for q in range(4): A(f"ds_read_b128 {stg[4*q:4*q+4]}, {t2} offset:{4096 + q*1024}")
    for q in range(4):
        A(f"s_waitcnt lgkmcnt({3-q})")
        for i in (4*q, 4*q+2): A(f"v_pk_add_f32 {accA[0][i:i+2]}, {accA[0][i:i+2]}, {stg[i:i+2]}")
        for i in (2*q, 2*q+1): A(cvo(accA[0], i))
        if q & 1:
            p = 2*q - 2
            A("s_nop 1")
            A(f"v_permlane32_swap_b32 {obuf[p]}, {obuf[p+2]}")
            A(f"v_permlane32_swap_b32 {obuf[p+1]}, {obuf[p+3]}")
            A(f"buffer_store_dwordx4 {obuf[p:p+4]}, {vOut}, s[{sO}:{sO+3}], s{OUTA} offen offset:{8*p} {outsc}")
    A(f"s_or_b32 s{T0}, s2, s{W_}"); A(f"s_cmp_lg_u32 s{T0}, 0"); A(f"s_cbranch_scc1 L_{N}_exit")
    A(f"v_mov_b32 {t2}, {hx(WS_EP)}"); A(f"v_mov_b32 {t1}, s{TAG}"); A("s_mov_b64 exec, 1")
    A(f"buffer_store_dword {t1}, {t2}, s[{sW}:{sW+3}], 0 offen sc1")
    A("s_mov_b64 exec, -1")
    A.label(f"L_{N}_exit")
    if stamps:
        A("s_waitcnt vmcnt(0)"); ST("end"); ST("rt1", True); ST.flush(sW, W_, t0, t1, T0)
        A(f"v_mov_b32 {t1}, s{CNT}"); A(f"buffer_store_dword {t1}, {t0}, s[{sW}:{sW+3}], s{T0} offen offset:124")
        gen.names = ST.names
    A.label(f"L_{N}_end")
    A("s_endpgm")
    retries()

    A.label(f"L_{N}_fb")
    mx = pq[4:8]
    kf, vf = KVr[0][0:8], KVr[0][8:16]
    for j in range(4): A(f"v_mov_b32 {mx[j]}, 0xff800000")
    A(f"v_subrev_u32 {vKV}, {7*0x2000 + 4096}, {vKV}")
    def fb_loop(lbl, body, loadv):
        A(f"s_mov_b32 s{KO}, 0")
        A.label(lbl)
        for st in range(2): A(f"buffer_load_dwordx4 {kf[4*st:4*st+4]}, {vKV}, s[{sW}:{sW+3}], s{KO} offen offset:{st*1024} sc1")
        if loadv:
            for st in range(2): A(f"buffer_load_dwordx4 {vf[4*st:4*st+4]}, {vKV}, s[{sW}:{sW+3}], s{KO} offen offset:{2048+st*1024} sc1")
        A("s_waitcnt vmcnt(0)")
        for j in range(4):
            A(f"{MFMA} {Sb[0]}, {kf[0:4]}, {Q[j][0:4]}, 0")
            A(f"{MFMA} {Sb[0]}, {kf[4:8]}, {Q[j][4:8]}, {Sb[0]}")
            A("s_nop 11")
            body(j)
        A(f"s_add_u32 s{KO}, s{KO}, 4096")
        A(f"s_cmp_lt_u32 s{KO}, 0x10000")
        A(f"s_cbranch_scc1 {lbl}")
    def body_max(j):
        for i in range(0, 16, 2): A(f"v_max3_f32 {mx[j]}, {mx[j]}, {Sb[0][i]}, {Sb[0][i+1]}")
    fb_loop(f"L_{N}_fbmax", body_max, False)
    for j in range(4):
        A(f"s_add_u32 s{T0}, s{W_}, {j+1}"); A(f"s_and_b32 s{T0}, s{T0}, 3"); A(f"s_lshl_b32 s{T0}, s{T0}, 2"); A(f"s_add_u32 s{T0}, s{T0}, s{W_}"); A(f"s_lshl_b32 s{T0}, s{T0}, 8")
        A(f"v_lshl_add_u32 {t0}, {lane}, 2, s{T0}")
        A(f"ds_write_b32 {t0}, {mx[j]} offset:{L_MAX}")
    A("s_waitcnt lgkmcnt(0)")
    A("s_barrier")
    A(f"v_and_b32 {t2}, 31, {lane}")
    for j in range(4):
        A(f"s_add_u32 s{T0}, s{W_}, {j+1}"); A(f"s_and_b32 s{T0}, s{T0}, 3"); A(f"s_lshl_b32 s{T0}, s{T0}, 10")
        A(f"v_lshl_add_u32 {t0}, {t2}, 2, s{T0}")
        for i in range(8): A(f"ds_read_b32 {Sb[0][i]}, {t0} offset:{L_MAX + i*128}")
        A("s_waitcnt lgkmcnt(0)")
        A(f"v_max3_f32 {t1}, {Sb[0][0]}, {Sb[0][1]}, {Sb[0][2]}"); A(f"v_max3_f32 {t1}, {t1}, {Sb[0][3]}, {Sb[0][4]}")
        A(f"v_max3_f32 {t1}, {t1}, {Sb[0][5]}, {Sb[0][6]}"); A(f"v_max_f32 {t1}, {t1}, {Sb[0][7]}")
        A(f"v_sub_f32 {t1}, 0, {t1}")
        A(f"v_cvt_pk_bf16_f32 {t3}, {t1}, {t1}"); A(f"v_and_b32 {tp[0]}, 0xffff0000, {t3}"); A(f"v_sub_f32 {t1}, {t1}, {tp[0]}")
        A(f"v_cvt_pk_bf16_f32 {t3}, {t1}, {t1}"); A(f"v_and_b32 {tp[1]}, 0xffff0000, {t3}"); A(f"v_sub_f32 {t1}, {t1}, {tp[1]}")
        A("s_mov_b32 exec_lo, 0")
        A(f"v_cvt_pk_bf16_f32 {Q[j][6]}, {tp[0]}, {tp[1]}")
        A(f"v_cvt_pk_bf16_f32 {Q[j][7]}, {t1}, 0")
        A("s_mov_b32 exec_lo, -1")
    for j in range(4):
        for i in range(16): A(f"v_mov_b32 {O[j][i]}, 0")
    A("s_barrier")
    def body_pv(j):
        for i in range(16): A(f"v_exp_f32 {Sb[0][i]}, {Sb[0][i]}")
        A("s_nop 0")
        for i in range(8): A(f"v_cvt_pk_bf16_f32 {P[i]}, {Sb[0][2*i]}, {Sb[0][2*i+1]}")
        A("s_nop 1")
        A(f"{MFMA} {O[j]}, {vf[0:4]}, {P[0:4]}, {O[j]}")
        A(f"{MFMA} {O[j]}, {vf[4:8]}, {P[4:8]}, {O[j]}")
    fb_loop(f"L_{N}_fbpv", body_pv, True)
    A("s_nop 11")
    for j in range(3):
        A(f"v_add_u32 {vRw}, s{RED[j]}, {vL16}")
        for q in range(4): A(f"ds_write_b128 {vRw}, {O[j][4*q:4*q+4]} offset:{j*4096 + q*1024}")
    A("s_waitcnt lgkmcnt(0)")
    A("s_barrier")
    reduce_norm(False)
    A(f"s_cmp_eq_u32 s{OK}, 1")
    A(f"s_cbranch_scc1 L_{N}_tail")
    norm_store(O[3], t1, OAS)
    A(f"s_branch L_{N}_tail")
    txt = add_pads(A.text(), N, f"L_{N}_end") if pads else A.text().replace(".p2align 12", "")
    return txt, kernel_desc(name, 256, 256, 102 if stamps else 80), (V.high, AG.high)

if __name__ == "__main__":
    t, d, n = gen()
    print({k: v // 4 for k, v in gen.log.items()}); print("pads", add_pads.count); print("kf", n, "leftover", gen.leftover, "hazards", check_hazards(t), "lines", t.count("\n"))
```

```python
import build as B, k1, k2, k2b, kf4 as kf
def make(kind, stamps=False, **kw):
    if kind in ("f", "fs"):
        nm = "gated_mix__mha_block__linear_attn_block__prompt_kernel"
        k2kw = dict(kw.get("k2", {})); mod = k2kw.pop("mod", None)
        import importlib
        m_ = importlib.import_module(mod) if mod else kf
        t, d, _ = m_.gen(stamps=stamps, **k2kw)
        make.names = getattr(m_.gen, "names", None)
        if kind == "fs": return B.assemble_single(nm, t, d, 256, 256, kf.LDS)
        return B.assemble([(nm, t, d, 256, 256, kf.LDS)])
    if kind == "v2":
        a = dict(stsc="sc1", pf_code=("attn_kernel", "L_attn_kernel_end")); a.update(kw.get("k1", {}))
        t1, d1, _ = k1.gen_k1(stamps=stamps, **a)
        t2, d2, _ = k2b.gen_k2(stamps=stamps, **kw.get("k2", {}))
        k2.gen_k2.names = getattr(k2b.gen_k2, "names", None)
        return B.assemble([("qkv_kernel", t1, d1, 256, 256, 163840), ("attn_kernel", t2, d2, 256, 256, k2b.K2_LDS)])
    t1, d1, _ = k1.gen_k1(stamps=stamps, **kw.get("k1", {}))
    ks = [("qkv_kernel", t1, d1, 256, 256, 163840)]
    t2, d2, _ = k2.gen_k2(fused=(kind == "two"), stamps=stamps, **kw.get("k2", {}))
    ks.append(("attn_kernel", t2, d2, 256, 256, k2.K2_LDS))
    if kind == "three":
        t3, d3, _ = k2.gen_k3()
        ks.append(("proj_kernel", t3, d3, 224, 256, 65536))
    return B.assemble(ks)
if __name__ == "__main__":
    import sys
    kind = sys.argv[1]; out = sys.argv[2]
    open(out, "w").write(make(kind))
```

```python
from common import *
from collections import deque
from pads import add_pads

L_RED, L_WO, WO_IMG = 0, 49152, 57344
L_KVX, L_MAX = 8192, 8192
LDS = 163840
SLOTB = [0, 24576, 49152, 73728, 0, 114688, 139264]
L_PB, L_PQ, L_EX, L_QX = 0, 57344, 114688, 131072
SPIN = 0x40000
ROLES = [2, 3, 0, 1, 0, 2, 1, 3, 2, 0, 3, 1, 2, 0, 3, 1]
ROLES1 = [0, 3, 2, 1, 2, 0, 3, 1, 0, 2, 1, 3, 2, 3, 0, 1]
role_bits = lambda R: sum(r << (2 * h) for h, r in enumerate(R))
TAGC = 0x9E3779B1
WS_FB, WS_FKV = WS_FB4, WS_FKV4

def gen(name="gated_mix__mha_block__linear_attn_block__prompt_kernel", bb=19, poll_at=49, force_fallback=False, NB=6, QM=3, stamps=False,
        fine=False, pace=2, flag_lag=9, rot=2, bchk=7, outsc="", aload_at=24, wo_at=30, pf_at=20, nfirst=4, late_poll=18, poll1=4, qpoll=6,
        pads=True, pf_hi=False, hb=2, clk=False, kvp_hi=True, look=2, skip=("kvpub", "Bdone", "kvseen")):
    A = Asm()
    V = Alloc("v", 1, 256); AG = Alloc("a", 0, 256)
    N = "f"
    sW, sO, sA, sB = 16, 20, 24, 28
    sX, sM = 4, 8; QWB, FLQ, PSEL, SCNT = 32, 33, 34, 35
    W_, H, QB, R_, T0, T1, T2 = 36, 37, 38, 39, 40, 41, 42
    PP, KC, XB, WB_, A_, B_, LX, LM, FLB, KPS, EPS, FLP = 43, 44, 45, 46, 47, 48, 49, 50, 51, 52, 54, 55
    ST0, ST1, IDX, OUTA, WL, OAS, OBS, FLO = 56, 57, 58, 59, 60, 61, 62, 63
    WSP = 64; TAG = 67; WOS = [68, 69, 70, 71]; RED = [72, 73, 74]; PFP = 76
    KO, OK, CNT, DONE, TW = 43, 46, 49, 53, 45
    lane = V(); t0 = V(); t1 = V(); t2 = V(); t3 = V(); vL16 = V(); vKV = V(); vKP = V(); vOT = V(); vg = V(); vRw = V(); vRr = V()
    vfl = V(); vfa = V(); vfb = V(); vft = V(); vpf = V(); vKX = V(); vOut = V()
    vWo = V(4); vWr = V(6)
    tp = V(2, 2)
    big = V(136, 4)
    Q = [big[8*j:8*j+8] for j in range(4)]
    Sb = [big[32:48], big[48:64]]
    P = big[64:72]
    O = [big[72+16*j:88+16*j] for j in range(4)]
    stg = V(64, 4)
    pq = V(8, 4); obuf = V(8, 4)
    Xk = Reg("a", 144, 112)
    KVr = [AG(16, 4) for _ in range(NB)]
    assert NB <= 8
    oBf = Reg("a", 192, 64)
    acc = [O[0], O[1]]; ob = [big[0:8], big[8:16]]
    accK, accV, kvp, ftmp = O[2], O[3], O[1], O[0]
    accQ, accP = Sb
    W3 = [stg[0:8], stg[8:16], stg[16:24]]; ptmp = stg[24:32]
    vXo = stg[32:36]; vT = stg[36:38]; vP2 = stg[38:40]; vG = stg[40]; vdum = stg[41]; vEp = stg[42]; vPs = stg[43]; vPa = stg[44:46]; vfq = stg[46]
    vXA, vXB, vM, vE0, vE1 = stg[47], stg[48], stg[49], stg[50], stg[51]
    vQr = stg[52:55]; vPk = [stg[56:60], stg[60:64]]
    A(kernel_head(name))
    ST = Stamps(A, stamps, 2)
    STc = lambda n: None if (fine or n in skip) else ST(n)
    A("s_cmp_ge_u32 s2, 256")
    A(f"s_cbranch_scc1 L_{N}_end")
    ST("rt0", True); ST("start")
    A(f"s_load_dwordx2 s[{WSP}:{WSP+1}], s[0:1], 72")
    A("s_load_dwordx8 s[4:11], s[0:1], 0")
    A("s_load_dwordx8 s[56:63], s[0:1], 32")
    A(f"v_lshrrev_b32 {t0}, 6, v0")
    A(f"v_and_b32 {lane}, 63, v0")
    A(f"v_readfirstlane_b32 s{W_}, {t0}")
    A("s_getpc_b64 s[14:15]")
    A.label(f"L_{N}_pc")
    A("s_lshr_b32 s3, s2, 3"); A("s_lshl_b32 s3, s3, 2"); A(f"s_add_u32 s3, s3, s{W_}"); A(f"s_lshl_b32 s{T0}, s3, 9")
    A(f"v_and_b32 {t0}, 3, {lane}"); A(f"v_lshl_add_u32 {t0}, {t0}, 7, s{T0}"); A(f"v_min_u32 {t0}, L_{N}_end-L_{N}_pc, {t0}")
    A(f"global_load_dword {vdum}, {t0}, s[14:15]")
    if hb == 2:
        A(f"s_and_b32 s{H}, s2, 3"); A(f"s_lshl_b32 s{H}, s{H}, 2"); A(f"s_bfe_u32 s{T0}, s2, 0x20003"); A(f"s_add_u32 s{H}, s{H}, s{T0}")
        A(f"s_lshr_b32 s{T1}, s2, 5"); A(f"s_bfe_u32 s{QB}, s2, 0x10002"); A(f"s_lshl_b32 s{QB}, s{QB}, 3"); A(f"s_add_u32 s{QB}, s{QB}, s{T1}")
        A(f"s_lshl_b32 s{T1}, s{T1}, 1"); A(f"s_add_u32 s{T0}, s{T0}, s{T1}"); A(f"s_lshl_b32 s{T0}, s{T0}, 1")
    else:
        A(f"s_and_b32 s{H}, s2, 7"); A(f"s_lshl_b32 s{H}, s{H}, 1"); A(f"s_bfe_u32 s{T0}, s2, 0x10003"); A(f"s_add_u32 s{H}, s{H}, s{T0}")
        A(f"s_lshr_b32 s{QB}, s2, 4"); A(f"s_mul_i32 s{T0}, s{T0}, 3"); A(f"s_add_u32 s{T0}, s{T0}, s{QB}")
    A(f"s_and_b32 s{R_}, s{H}, 1"); A(f"s_lshr_b32 s{PP}, s{H}, 1")
    if rot:
        A(f"s_and_b32 s{T1}, s2, 7"); A(f"s_add_u32 s{T0}, s{T0}, s{T1}")
        A(f"s_mul_i32 s{T1}, s{T0}, 37"); A(f"s_lshr_b32 s{T1}, s{T1}, 8"); A(f"s_mul_i32 s{T1}, s{T1}, 7"); A(f"s_sub_u32 s{KC}, s{T0}, s{T1}")
    else: A(f"s_mov_b32 s{KC}, 0")
    A(f"s_and_b32 s{A_}, s{W_}, 1"); A(f"s_lshr_b32 s{B_}, s{W_}, 1")
    A(f"s_lshl_b32 s{T0}, s{QB}, 2"); A(f"s_add_u32 s{T0}, s{T0}, s{W_}"); A(f"s_mul_i32 s{XB}, s{T0}, {32*XROW}")
    A(f"s_mul_i32 s{WB_}, s{W_}, {16*WROW}")
    A(f"s_lshl_b32 s{LX}, s{W_}, 12"); A(f"s_lshl_b32 s{LM}, s{W_}, 11")
    A(f"v_lshrrev_b32 {t0}, 3, {lane}"); A(f"v_and_b32 {t1}, 7, {lane}"); A(f"v_xor_b32 {t2}, {t0}, {t1}"); A(f"v_lshlrev_b32 {t2}, 4, {t2}")
    A(f"v_mul_u32_u24 {t3}, {XROW}, {t0}"); A(f"v_add_u32 {vXA}, {t2}, {t3}"); A(f"v_xor_b32 {vXB}, 16, {vXA}")
    A(f"v_lshlrev_b32 {t2}, 1, {t0}"); A(f"v_and_b32 {t2}, 4, {t2}"); A(f"v_xor_b32 {t2}, {t2}, {t1}"); A(f"v_min_u32 {t2}, 6, {t2}"); A(f"v_lshlrev_b32 {t2}, 4, {t2}")
    A(f"v_mul_u32_u24 {t3}, {WROW}, {t0}")
    A(f"s_mul_i32 s{T0}, s{PP}, 112"); A(f"s_add_u32 s{T1}, s{R_}, 1"); A(f"s_mul_i32 s{T1}, s{T1}, 896"); A(f"s_add_u32 s{T0}, s{T0}, s{T1}")
    A(f"v_add3_u32 {vM}, {t2}, {t3}, s{T0}")
    A("s_waitcnt lgkmcnt(0)")
    A(f"s_mov_b32 s{sA}, s8"); A(f"s_mov_b32 s{sA+1}, s9")
    srd(A, sM, "s6", "s7", W_BYTES)
    A(f"s_mov_b32 s{sX+2}, {hx(X_BYTES)}"); A(f"s_mov_b32 s{sX+3}, 0x20000")
    vm = VmQ(); vm.issue("pf")
    def dma_groups(i):
        sl = SLOTB[i]
        g = []
        for blk in range(4):
            pre = [f"s_lshl_b32 s{T0}, s{KC}, 7", f"s_add_u32 m0, s{LX}, {sl}", f"s_add_u32 s{T0}, s{T0}, s{XB}"] if blk == 0 else [f"s_add_u32 s{T0}, s{T0}, 6144"]
            g.append(pre + [f"buffer_load_dwordx4 {vXA if blk < 2 else vXB}, s[{sX}:{sX+3}], s{T0} offen offset:{blk*1024} lds"])
        for q in range(2):
            pre = [f"s_mul_i32 s{T1}, s{KC}, {64*WROW}", f"s_add_u32 m0, s{LM}, {sl + 16384}", f"s_add_u32 s{T1}, s{T1}, s{WB_}"] if q == 0 else [f"s_add_u32 s{T1}, s{T1}, {8*WROW-1024}"]
            post = [f"s_add_u32 s{KC}, s{KC}, 1", f"s_cmp_eq_u32 s{KC}, 7", f"s_cselect_b32 s{KC}, 0, s{KC}"] if q == 1 else []
            g.append(pre + [f"buffer_load_dwordx4 {vM}, s[{sM}:{sM+3}], s{T1} offen offset:{q*1024} lds"] + post)
        return g
    def p_groups(img, i):
        return [[f"s_lshl_b32 s{T1}, s{KC}, 13", f"s_add_u32 m0, s{LM}, {img*57344 + i*8192}", f"s_add_u32 s{T1}, s{T1}, s{QWB}",
                 f"buffer_load_dwordx4 {vL16}, s[{sW}:{sW+3}], s{T1} offen sc1 lds"],
                [f"s_add_u32 s{KC}, s{KC}, 1", f"buffer_load_dwordx4 {vL16}, s[{sW}:{sW+3}], s{T1} offen offset:1024 sc1 lds",
                 f"s_cmp_eq_u32 s{KC}, 7", f"s_cselect_b32 s{KC}, 0, s{KC}"] + ([f"s_add_u32 s{QWB}, s{QWB}, 57344"] if (img, i) == (0, 6) else [])]
    PG = [x for img in range(2) for c in range(7) for x in p_groups(img, c)]
    for x in dma_groups(0):
        for y in x: A(y)
        vm.issue("c0")
    A(f"s_mov_b32 s{sA+2}, {hx(WO_BYTES)}"); A(f"s_mov_b32 s{sA+3}, 0x20000")
    srd(A, sW, f"s{WSP}", f"s{WSP+1}", WS_USED); srd(A, sB, "s58", "s59", WO_BYTES); srd(A, sO, "s62", "s63", OUT_BYTES)
    A(f"v_lshlrev_b32 {vL16}, 4, {lane}")
    A(f"s_mul_i32 s{T0}, s{QB}, 28"); A(f"s_mul_i32 s{T1}, s{W_}, 7"); A(f"s_add_u32 s{T0}, s{T0}, s{T1}")
    A(f"v_lshrrev_b32 {t0}, 3, {lane}"); A(f"v_min_u32 {t0}, 6, {t0}"); A(f"v_add_u32 {t0}, s{T0}, {t0}")
    A(f"v_and_b32 {t1}, 3, {lane}"); A(f"v_mul_u32_u24 {t2}, {WROW}, {t0}"); A(f"v_lshl_add_u32 {t2}, {t1}, 4, {t2}")
    A(f"s_mul_i32 s{T1}, s{H}, 56"); A(f"v_add_u32 {t2}, s{T1}, {t2}")
    A(f"v_and_b32 {t3}, 4, {lane}"); A(f"v_cmp_eq_u32 vcc, 0, {t3}")
    A(f"v_mul_u32_u24 {t3}, 224, {t3}"); A(f"v_add_u32 {t3}, 896, {t3}"); A(f"v_add_u32 {t3}, {t3}, {t2}")
    A(f"global_load_dwordx4 {vPk[0]}, {t3}, s[56:57]"); vm.issue("g")
    A(f"v_mov_b32 {vPa[0]}, s56"); A(f"v_mov_b32 {vPa[1]}, s57"); A(f"v_mov_b32 {t1}, s{sM}"); A(f"v_mov_b32 {t3}, s{sM+1}")
    A(f"v_cndmask_b32 {vPa[0]}, {vPa[0]}, {t1}, vcc"); A(f"v_cndmask_b32 {vPa[1]}, {vPa[1]}, {t3}, vcc")
    A(f"v_add_co_u32 {vPa[0]}, vcc, {vPa[0]}, {t2}"); A("s_nop 1"); A(f"v_addc_co_u32 {vPa[1]}, vcc, 0, {vPa[1]}, vcc")
    A(f"global_load_dwordx4 {vPk[1]}, {vPa}, off"); vm.issue("g")
    A(f"v_lshlrev_b32 {t2}, 1, {t0}")
    A(f"global_load_ushort {vG}, {t2}, s[60:61]"); vm.issue("g")
    A(f"v_and_b32 {t2}, 4, {t2}"); A(f"v_and_b32 {t1}, 7, {lane}"); A(f"v_xor_b32 {t1}, {t1}, {t2}")
    A(f"v_lshlrev_b32 {t1}, 4, {t1}"); A(f"v_lshl_add_u32 {t1}, {t0}, 7, {t1}")
    A(f"s_mul_i32 s{T0}, s{H}, 114688"); A(f"s_add_u32 s{T0}, s{T0}, {hx(WS_QW)}"); A(f"v_add_u32 {vPs}, s{T0}, {t1}")
    A(f"s_add_u32 s{QWB}, s{T0}, s{LM}")
    A(f"s_lshl_b32 s{T0}, s{H}, 11"); A(f"s_add_u32 s{T0}, s{T0}, {hx(WS_FQ)}"); A(f"v_and_b32 {t1}, 15, {lane}"); A(f"v_lshl_add_u32 {vfq}, {t1}, 7, s{T0}")
    A(f"v_add_u32 {vfb}, {WS_FB - WS_FQ}, {vfq}")
    A(f"s_lshl_b32 s{T1}, s{QB}, 7"); A(f"s_add_u32 s{FLQ}, s{T0}, s{T1}"); A(f"s_add_u32 s{FLB}, s{FLQ}, {WS_FB - WS_FQ}"); A(f"s_add_u32 s{FLP}, s{FLQ}, {hx(WS_FKV - WS_FQ)}")
    A(f"v_mov_b32 {t0}, {hx(WS_EP)}")
    A(f"buffer_load_dword {vEp}, {t0}, s[{sW}:{sW+3}], 0 offen sc1"); vm.issue("g")
    for c_ in range(1, look):
        for x in dma_groups(c_):
            for y in x: A(y)
            vm.issue(f"c{c_}")
    A(f"v_and_b32 {t0}, 7, {lane}"); A(f"v_bfe_u32 {t1}, {lane}, 3, 2"); A(f"v_lshrrev_b32 {t2}, 5, {lane}"); A(f"v_xor_b32 {t2}, {t2}, {t0}")
    A(f"v_lshrrev_b32 {t3}, 1, {t1}"); A(f"v_xor_b32 {t2}, {t2}, {t3}"); A(f"v_lshlrev_b32 {t2}, 4, {t2}")
    A(f"v_lshl_add_u32 {t2}, {t0}, 7, {t2}"); A(f"v_lshl_add_u32 {t2}, {t1}, 10, {t2}")
    A(f"v_add_u32 {vXo[0]}, s{LX}, {t2}")
    for j in range(1, 4): A(f"v_xor_b32 {vXo[j]}, {32*j}, {vXo[0]}")
    A(f"v_bfe_u32 {t0}, {lane}, 2, 2"); A(f"v_and_b32 {t1}, 3, {lane}"); A(f"v_lshlrev_b32 {t1}, 3, {t1}")
    A(f"v_and_b32 {t2}, 16, {lane}"); A(f"v_lshl_add_u32 {t1}, {t2}, 1, {t1}")
    A(f"v_lshrrev_b32 {t2}, 5, {lane}"); A(f"v_lshl_add_u32 {t2}, {t2}, 3, {t0}")
    A(f"v_lshlrev_b32 {t3}, 5, {t0}"); A(f"v_and_b32 {t3}, 64, {t3}"); A(f"v_add_u32 {t3}, {t3}, {t1}")
    A(f"v_lshl_add_u32 {vP2[0]}, {t2}, 7, {t3}"); A(f"v_xor_b32 {vP2[1]}, 64, {vP2[0]}"); A(f"v_add_u32 {vT[0]}, 16384, {vP2[0]}")
    A(f"v_add_u32 {t3}, 56, {t3}"); A(f"v_and_b32 {t3}, 0x7f, {t3}"); A(f"v_lshl_add_u32 {t3}, {t2}, 7, {t3}"); A(f"v_add_u32 {vT[1]}, 16384, {t3}")
    A("s_cmp_lt_u32 s3, 64")
    A(f"s_cselect_b32 s{PFP}, s{sA}, s58"); A(f"s_cselect_b32 s{PFP+1}, s{sA+1}, s59")
    A(f"s_and_b32 s{T0}, s3, 63"); A(f"s_mul_i32 s{T0}, s{T0}, 49"); A(f"v_min_u32 {vpf}, 12, {lane}"); A(f"v_add_lshl_u32 {vpf}, {vpf}, s{T0}, 7")
    A(f"s_lshl_b32 s{T0}, s{PP}, 5"); A(f"s_add_u32 s{T0}, s{T0}, s{QB}"); A(f"s_lshl_b32 s{T0}, s{T0}, 2"); A(f"s_add_u32 s{T0}, s{T0}, s{W_}")
    A(f"s_lshl_b32 s{T0}, s{T0}, 1"); A(f"s_add_u32 s{T0}, s{T0}, s{R_}"); A(f"s_lshl_b32 s{ST0}, s{T0}, 11"); A(f"s_add_u32 s{ST1}, s{ST0}, {64*4096}")
    A(f"s_lshl_b32 s{T0}, s{H}, 2"); A(f"s_add_u32 s{T0}, s{T0}, s{W_}"); A(f"s_lshl_b32 s{T1}, s{T0}, 16"); A(f"s_add_u32 s{T1}, s{T1}, 4096"); A(f"v_add_u32 {vKV}, s{T1}, {vL16}")
    A(f"s_lshl_b32 s{T1}, s{T0}, 14"); A(f"s_add_u32 s{T1}, s{T1}, {hx(WS_KVP + 4096)}"); A(f"v_add_u32 {vKP}, s{T1}, {vL16}")
    A(f"s_lshl_b32 s{T0}, s{QB}, 10"); A(f"s_add_u32 s{T1}, s{T1}, s{T0}"); A(f"s_sub_u32 s{KPS}, s{T1}, 4096")
    A(f"s_add_u32 s{T0}, s{LX}, {L_EX}"); A(f"v_add_u32 {vE0}, s{T0}, {vL16}")
    A(f"s_lshl_b32 s{T0}, s{W_}, 10"); A(f"s_add_u32 s{T0}, s{T0}, {L_EX}"); A(f"v_add_u32 {vE1}, s{T0}, {vL16}")
    A(f"s_add_u32 s{T0}, s{LM}, {L_QX}"); A(f"v_add_u32 {vRw}, s{T0}, {vL16}")
    for j in range(3):
        A(f"s_add_u32 s{T1}, s{W_}, {j+1}"); A(f"s_and_b32 s{T1}, s{T1}, 3"); A(f"s_mul_i32 s{RED[j]}, s{T1}, 12288")
        A(f"s_lshl_b32 s{T1}, s{T1}, 11"); A(f"s_add_u32 s{T1}, s{T1}, {L_QX}"); A(f"v_add_u32 {vQr[j]}, s{T1}, {vL16}")
    A(f"s_lshl_b32 s{T0}, s{PP}, 3"); A(f"s_add_u32 s{T0}, s{T0}, s{W_}"); A(f"s_lshl_b32 s{T0}, s{T0}, 9"); A(f"s_add_u32 s{T0}, s{T0}, {hx(WS_FKV)}")
    A(f"v_and_b32 {t0}, 3, {lane}"); A(f"v_and_b32 {t1}, 4, {lane}"); A(f"v_lshlrev_b32 {t1}, 9, {t1}"); A(f"v_lshl_add_u32 {t0}, {t0}, 7, {t1}"); A(f"v_add_u32 {vfa}, s{T0}, {t0}")
    A(f"s_lshl_b32 s{T0}, s{QB}, 2"); A(f"s_add_u32 s{T0}, s{T0}, s{W_}"); A(f"s_lshl_b32 s{T0}, s{T0}, 4"); A(f"s_add_u32 s{T0}, s{T0}, s{H}")
    A(f"s_lshl_b32 s{T1}, s{T0}, 7"); A(f"s_add_u32 s{FLO}, s{T1}, {hx(WS_FO)}")
    A(f"s_lshl_b32 s{T0}, s{T0}, 11"); A(f"s_add_u32 s{OAS}, s{T0}, {hx(WS_OA)}"); A(f"s_add_u32 s{OBS}, s{T0}, {hx(WS_OB)}")
    A(f"s_lshl_b32 s{T0}, s{B_}, 10"); A(f"s_lshl_b32 s{T1}, s{A_}, 3"); A(f"s_add_u32 s{T0}, s{T0}, s{T1}"); A(f"s_add_u32 s{T0}, s{T0}, {L_KVX}"); A(f"v_add_u32 {vKX}, s{T0}, {vL16}")
    A(f"s_mul_i32 s{T1}, s{W_}, 12288"); A(f"v_add_u32 {vRr}, s{T1}, {vL16}")
    A(f"s_lshr_b32 s{IDX}, s2, 3")
    A(f"s_mul_i32 s{T0}, s{IDX}, 37"); A(f"s_lshr_b32 s{T0}, s{T0}, 8")
    A(f"s_mul_i32 s{T2}, s{T0}, 7"); A(f"s_sub_u32 s{T2}, s{IDX}, s{T2}")
    A(f"s_min_u32 s{T0}, s{T0}, 3")
    A(f"s_and_b32 s{T1}, s2, 7"); A(f"s_lshl_b32 s{T1}, s{T1}, 2"); A(f"s_add_u32 s{T0}, s{T0}, s{T1}")
    A(f"s_lshl_b32 s{T0}, s{T0}, 1"); A(f"s_add_u32 s{T0}, s{T0}, s{A_}")
    A(f"s_mul_i32 s{OUTA}, s{T0}, {32*XROW}"); A(f"s_lshl_b32 s{T1}, s{T2}, 1"); A(f"s_add_u32 s{T1}, s{T1}, s{B_}"); A(f"s_lshl_b32 s{T1}, s{T1}, 6"); A(f"s_add_u32 s{OUTA}, s{OUTA}, s{T1}")
    A(f"s_lshl_b32 s{T0}, s{T0}, 1"); A(f"s_add_u32 s{T0}, s{T0}, s{B_}")
    A(f"s_lshl_b32 s{T1}, s{T0}, 14"); A(f"s_add_u32 s{T1}, s{T1}, {hx(WS_OB + 4096)}"); A(f"v_add_u32 {vOT}, s{T1}, {vL16}")
    A(f"s_lshl_b32 s{T1}, s{T0}, 10"); A(f"s_add_u32 s{T1}, s{T1}, {hx(WS_FO)}"); A(f"v_and_b32 {t0}, 7, {lane}"); A(f"v_lshl_add_u32 {vft}, {t0}, 7, s{T1}")
    A(f"v_and_b32 {t0}, 31, {lane}"); A(f"v_mul_u32_u24 {t0}, {XROW}, {t0}"); A(f"v_lshrrev_b32 {t1}, 5, {lane}"); A(f"v_lshl_add_u32 {vOut}, {t1}, 4, {t0}")
    A(f"v_lshrrev_b32 {t0}, 3, {lane}"); A(f"v_mul_u32_u24 {t0}, {XROW}, {t0}")
    A(f"v_lshrrev_b32 {t1}, 2, {lane}"); A(f"v_and_b32 {t1}, 4, {t1}"); A(f"v_and_b32 {t2}, 7, {lane}"); A(f"v_xor_b32 {t1}, {t1}, {t2}")
    A(f"v_lshl_add_u32 {t0}, {t1}, 4, {t0}"); A(f"s_lshl_b32 s{T0}, s{T2}, 7"); A(f"v_add_u32 {vWo[0]}, s{T0}, {t0}")
    for q_ in range(1, 4): A(f"v_add_u32 {vWo[q_]}, {q_*(8*XROW-1024)}, {vWo[0]}")
    A(f"s_mul_i32 s{WOS[0]}, s{W_}, {112*XROW}")
    for g in range(1, 4): A(f"s_add_u32 s{WOS[g]}, s{WOS[0]}, {g*32*XROW}")
    A(f"s_mul_i32 s{WL}, s{W_}, 14336")
    A(f"v_and_b32 {t1}, 3, {lane}"); A(f"v_lshlrev_b32 {t1}, 3, {t1}")
    A(f"v_and_b32 {t0}, 16, {lane}"); A(f"v_lshl_add_u32 {t1}, {t0}, 1, {t1}")
    A(f"v_and_b32 {t0}, 8, {lane}"); A(f"v_lshl_add_u32 {t1}, {t0}, 3, {t1}")
    A(f"s_lshl_b32 s{T0}, s{B_}, 6"); A(f"v_xor_b32 {t1}, s{T0}, {t1}")
    A(f"v_bfe_u32 {t0}, {lane}, 2, 2"); A(f"v_lshl_add_u32 {t1}, {t0}, 7, {t1}")
    A(f"s_mul_i32 s{T0}, s{B_}, 28672"); A(f"s_add_u32 s{T0}, s{T0}, {L_WO + WO_IMG}")
    A(f"v_add_u32 {vWr[4]}, s{T0}, {t1}"); A(f"v_xor_b32 {vWr[5]}, 64, {vWr[4]}")
    A(f"v_lshrrev_b32 {t0}, 5, {lane}"); A(f"v_lshl_add_u32 {vWr[2]}, {t0}, 9, {vWr[4]}"); A(f"v_xor_b32 {vWr[3]}, 64, {vWr[2]}")
    A(f"v_subrev_u32 {vWr[0]}, {WO_IMG}, {vWr[2]}"); A(f"v_subrev_u32 {vWr[1]}, {WO_IMG}, {vWr[3]}")
    for i in (6, 7): A(f"v_mov_b32 {Q[3][i]}, 0"); A(f"v_mov_b32 {pq[i]}, 0"); A(f"v_mov_b32 {obuf[i]}, 0")
    for i in range(4): A(f"v_mov_b32 {obuf[i]}, -1")
    A(f"s_mov_b32 s{PSEL}, 0x07060100")
    A(f"s_mov_b32 s{T1}, {hx(ONES)}"); A(f"s_cmp_eq_u32 s{R_}, 0"); A(f"s_cselect_b32 s{T0}, 0x3f80, s{T1}")
    for t in range(2):
        for i in range(7): A(f"v_mov_b32 {ob[t][i]}, {hx(ONES)}")
        A(f"v_mov_b32 {ob[t][7]}, s{T0}")
    A(";TOUCH")
    A(f"s_cmp_lg_u32 s{R_}, 0")
    A(f"s_cbranch_scc1 L_{N}_N")
    A(f"s_branch L_{N}_T")
    A(".p2align 12")
    A.label(f"L_{N}_T")

    def flag_store(sreg):
        return [f"v_lshlrev_b32 {t0}, 2, {lane}", f"v_mov_b32 {t1}, s{TAG}", "s_mov_b64 exec, 0xffffffff",
                f"buffer_store_dword {t1}, {t0}, s[{sW}:{sW+3}], s{sreg} offen sc1", "s_mov_b64 exec, -1"]
    dummy = f"buffer_load_dword {vEp}, {vfa}, s[{sX}:{sX+3}], 0 offen"
    def pub(lbl, sreg):
        return [f"s_cmp_lg_u32 s{W_}, 0", f"s_cbranch_scc1 L_{N}_{lbl}0"] + flag_store(sreg) + [f"s_branch L_{N}_{lbl}1", f"L_{N}_{lbl}0:", dummy, f"L_{N}_{lbl}1:"]
    fqld = f"buffer_load_dword {vfl}, {vfq}, s[{sW}:{sW+3}], 0 offen sc1"
    kvld = f"buffer_load_dword {vfl}, {vfa}, s[{sW}:{sW+3}], 0 offen sc1"
    def spin(lbl, reload):
        A(f"s_mov_b32 s{SCNT}, 0")
        A.label(f"L_{N}_{lbl}")
        A(f"v_cmp_ne_u32 vcc, s{TAG}, {vfl}")
        A(f"s_cbranch_vccz L_{N}_{lbl}_done")
        A(reload)
        A(f"s_add_u32 s{SCNT}, s{SCNT}, 1")
        A(f"s_cmp_lt_u32 s{SCNT}, {SPIN}")
        A("s_waitcnt vmcnt(0)")
        A(f"s_cbranch_scc1 L_{N}_{lbl}")
        A.label(f"L_{N}_{lbl}_done")
    def reads(step):
        ks = step & 3
        return [f"ds_read_b128 {Xk[4*step:4*step+4]}, {vXo[ks]}"] + \
               [f"ds_read_b64_tr_b16 {W3[step%3][4*t+2*half:4*t+2*half+2]}, {vT[t]} offset:{ks*2048 + half*512}" for t in range(2) for half in range(2)]
    def pass1(T):
        vr_ = "T" if T else "N"
        q = VmQ(); q.q = list(vm.q)
        for i in range(7):
            A(f"s_waitcnt vmcnt({q.wait_for([f'c{i}'] + (['g'] if i == 0 else []))})")
            if i == 0:
                A(f"v_readfirstlane_b32 s66, {vEp}")
                A("s_mov_b32 exec_lo, 0x80808080"); A("s_mov_b32 exec_hi, 0x80808080")
                A(f"v_perm_b32 {vPk[1][2]}, {vPk[1][2]}, {vG}, s{PSEL}")
                A("s_mov_b64 exec, -1")
                A(f"s_mov_b32 s{T2}, 57344")
                A(f"buffer_store_dwordx4 {vPk[0]}, {vPs}, s[{sW}:{sW+3}], 0 offen sc1"); q.issue("pk")
                A(f"buffer_store_dwordx4 {vPk[1]}, {vPs}, s[{sW}:{sW+3}], s{T2} offen sc1"); q.issue("pk")
                A(f"s_add_u32 s{TAG}, s66, {hx(TAGC)}")
                if stamps and not fine: ST.n = 2; ST.names = ST.names[:2]
                STc("c0")
            A("s_barrier")
            for x in reads(4*i) + reads(4*i + 1): A(x)
            if i == look:
                for x in pub("q" + vr_, FLQ): A(x)
                q.issue("fq")
            if i == qpoll: A(fqld); q.issue("fqld")
            dm = dma_groups(i + look) if i + look < 7 else []
            for x in dm: q.issue(f"c{i+look}")
            dm = dm + [[]] * 8
            for ks in range(4):
                step = 4*i + ks
                A(f"s_waitcnt lgkmcnt({5 if ks < 3 else 0})")
                for t in range(2):
                    x, w = Xk[4*step:4*step+4], W3[step%3][4*t:4*t+4]
                    c = "0" if step == 0 else str(acc[t])
                    A(f"{MFMA} {acc[t]}, {w}, {x}, {c}" if T else f"{MFMA} {acc[t]}, {x}, {w}, {c}")
                    if t == 0 and ks < 2:
                        for y in reads(step + 2): A(y)
                    for y in dm[2*ks + t]: A(y)
                    if ks >= 2 and i < 6:
                        delta = SLOTB[i+1] - SLOTB[i]
                        for y in ([vXo[0], vXo[1]], [vXo[2]], [vXo[3], vT[0]], [vT[1]])[2*(ks-2) + t]: A(f"v_add_u32 {y}, {hx(delta)}, {y}")
        STc("pass1")
        if clk: ST("rtP", True)
        if T: A("s_nop 10")
        else: A("s_mov_b32 exec_lo, 0xefffffff"); A("s_mov_b32 exec_hi, 0xefffffff"); A("s_nop 8")
        for t in range(2):
            for i in range(8):
                if T and i == 6: A("s_mov_b64 exec, 0xffffffff")
                A(f"v_cvt_pk_bf16_f32 {ob[t][i]}, {acc[t][2*i]}, {acc[t][2*i+1]}")
            A("s_mov_b64 exec, -1")
            for st in range(2): A(f"buffer_store_dwordx4 {ob[t][4*st:4*st+4]}, {vL16}, s[{sW}:{sW+3}], s{[ST0, ST1][t]} offen offset:{1024*st} sc1")
            if not T and t == 0: A("s_mov_b32 exec_lo, 0xefffffff"); A("s_mov_b32 exec_hi, 0xefffffff")
    pass1(True)
    A(f"s_branch L_{N}_kvpub")
    A(".p2align 12")
    A.label(f"L_{N}_N")
    pass1(False)
    A.label(f"L_{N}_kvpub")
    A(";PAD")
    A("s_waitcnt vmcnt(4)")
    spin("pollQ", fqld)
    for x in PG[:6]:
        for y in x: A(y)
    A("s_waitcnt vmcnt(0)")
    A("s_barrier")
    STc("kvpub")
    for x in pub("kv", FLP): A(x)
    def reads2(img, k):
        return [f"ds_read_b64_tr_b16 {W3[(28*img+k)%3][4*t+2*half:4*t+2*half+2]}, {vP2[t]} offset:{k*2048 + half*512}" for t in range(2) for half in range(2)]
    def step2(img, k, e0=(), e1=()):
        rd = reads2(img, k + 2) if k < 26 else (reads2(1, k - 26) if img == 0 else [])
        b_ = W3[(28*img+k)%3]; x = Xk[4*k:4*k+4]
        A(f"s_waitcnt lgkmcnt({4 if (img, k) != (1, 27) else 0})")
        for t in range(2):
            d = [[accK, accV], [accQ, accP]][img][t]; c = "0" if k == 0 else str(d)
            A(f"{MFMA} {d}, {x}, {b_[4*t:4*t+4]}, {c}" if img == 0 else f"{MFMA} {d}, {b_[4*t:4*t+4]}, {x}, {c}")
            for y in rd[2*t:2*t+2]: A(y)
            for y in (e0, e1)[t]:
                if not y.startswith("VM:"): A(y)
    for x in reads2(0, 0) + reads2(0, 1): A(x)
    pre = [f"v_mov_b32 {ob[0][i]}, 0" for i in range(8)] + [f"v_mov_b32 {ob[1][i]}, {hx(ONES)}" for i in range(8)]
    for k in range(28):
        if k == 10: A("s_waitcnt vmcnt(2)"); A("s_barrier")
        if k == 26:
            A("s_waitcnt vmcnt(0)"); A("s_barrier")
            for t in range(2): A(f"v_add_u32 {vP2[t]}, {L_PQ}, {vP2[t]}")
        step2(0, k, PG[6 + k] if k < 22 else (), [pre.pop()] if pre else ())
    STc("epi1")
    vm = VmQ(); issued = {}
    def emit(item):
        for x in item:
            if x.startswith("VM:"): vm.issue(x[3:]); issued[x[3:]] = issued.get(x[3:], 0) + 1
            elif x.startswith("WAIT:"):
                n = vm.wait_for(x[5:])
                if n is not None: A(f"s_waitcnt vmcnt({n})")
            elif x.startswith("SPIN:"):
                _, lbl, rl = x.split(":", 2); spin(lbl, rl)
            else: A(x)
    gl = lambda dst, va, off: f"global_load_dwordx4 {dst}, {va}, s[{WSP}:{WSP+1}] offset:{off} sc1"
    def ldk(n): return [[gl(KVr[n%NB][4*st:4*st+4], vKV, (n & 1)*4096 - 4096 + st*1024), f"VM:K{n}"] for st in range(2)]
    def ldv(n): return [[gl(KVr[n%NB][8+4*st:12+4*st], vKV, (n & 1)*4096 - 2048 + st*1024), f"VM:V{n}"] + ([f"v_add_u32 {vKV}, 0x2000, {vKV}"] if (n & 1 and st and n < 15) else []) for st in range(2)]
    first_kv = sum((ldk(n) + ldv(n) for n in range(nfirst)), [])
    def phi_ops(x, tmp):
        r = []
        for g in range(0, 16, 4):
            r += [f"v_mul_f32 {tmp[g+i]}, s{T2}, {x[g+i]}" for i in range(4)] + [f"v_exp_f32_e64 {tmp[g+i]}, {tmp[g+i]} clamp" for i in range(4)]
            r += [f"v_max_f32 {x[g+i]}, s{EPS}, {x[g+i]}" for i in range(4)] + [f"v_add_f32 {x[g+i]}, {x[g+i]}, {tmp[g+i]}" for i in range(4)]
        return r
    ex2 = {}
    def at2(k, t, items): ex2.setdefault((k, t), []).extend(items)
    at2(0, 0, [f"s_mov_b32 s{T2}, {hx(f32bits(LOG2E))}", f"s_mov_b32 s{EPS}, {hx(f32bits(1e-6))}"])
    at2(1, 1, ["s_mov_b32 exec_lo, 0xefffffff", "s_mov_b32 exec_hi, 0xefffffff"] + [f"v_cvt_pk_bf16_f32 {ob[1][i]}, {accV[2*i]}, {accV[2*i+1]}" for i in range(8)] + ["s_mov_b64 exec, -1"])
    po = phi_ops(accK, ftmp)
    for u in range(16): at2(2 + u // 2, u & 1, po[4*u:4*u+4])
    at2(10, 0, ["s_mov_b32 exec_lo, 0x0fffffff", "s_mov_b32 exec_hi, 0x0fffffff"] + [f"v_cvt_pk_bf16_f32 {ob[0][i]}, {accK[2*i]}, {accK[2*i+1]}" for i in range(8)] + ["s_mov_b64 exec, -1"])
    at2(10, 1, [f"{MFMA} {kvp}, {ob[0][0:4]}, {ob[1][0:4]}, 0"])
    at2(11, 0, [f"{MFMA} {kvp}, {ob[0][4:8]}, {ob[1][4:8]}, {kvp}"])
    at2(poll1, 1, [kvld])
    at2(14, 0, [f"ds_write_b128 {vE0}, {kvp[4*q_:4*q_+4]} offset:{q_*1024}" for q_ in range(2)])
    at2(14, 1, [f"ds_write_b128 {vE0}, {kvp[4*q_:4*q_+4]} offset:{q_*1024}" for q_ in range(2, 4)])
    at2(16, 1, ["s_waitcnt lgkmcnt(0)", "s_barrier"] + [f"ds_read_b128 {ftmp[4*q_:4*q_+4]}, {vE1} offset:{q_*4096}" for q_ in range(4)])
    sm = [f"v_add_f32 {ftmp[i]}, {ftmp[i]}, {ftmp[4+i]}" for i in range(4)] + [f"v_add_f32 {ftmp[8+i]}, {ftmp[8+i]}, {ftmp[12+i]}" for i in range(4)] + [f"v_add_f32 {ftmp[i]}, {ftmp[i]}, {ftmp[8+i]}" for i in range(4)]
    for u in range(3): at2(19 + u // 2, u & 1, sm[4*u:4*u+4])
    for k in range(13): step2(1, k, ex2.get((k, 0), ()), ex2.get((k, 1), ()))
    A("s_waitcnt vmcnt(0)"); A(f"v_cmp_ne_u32 vcc, s{TAG}, {vfl}")
    A(f"s_cbranch_vccnz L_{N}_late")
    kpst = f"buffer_store_dwordx4 {ftmp[0:4]}, {vL16}, s[{sW}:{sW+3}], s{KPS} offen sc1"
    A(f"s_mov_b32 s{DONE}, 1")
    fk = list(first_kv); nafter = 0
    for k in range(13, 28):
        e1 = list(ex2.get((k, 1), ()))
        if k == 21: e1.append(kpst); nafter = len(fk)
        elif fk: e1 += fk.pop(0)
        step2(1, k, ex2.get((k, 0), ()), e1)
    for it in fk:
        for x in it:
            if not x.startswith("VM:"): A(x)
    A(f"s_branch L_{N}_p2done")
    A.label(f"L_{N}_late")
    A(";PAD")
    A(f"s_mov_b32 s{DONE}, 0")
    for k in range(13, 28): step2(1, k, ex2.get((k, 0), ()), list(ex2.get((k, 1), ())) + ([kvld] if k == late_poll else []) + ([kpst] if k == 21 else []))
    A.label(f"L_{N}_p2done")
    A(";PAD")
    STc("pass2")
    A(f"s_mov_b32 s{KO}, {hx(f32bits(QSCALE))}")
    A("s_nop 8")
    for i in range(16): A(f"v_mul_f32 {accQ[i]}, s{KO}, {accQ[i]}")
    for i in range(6): A(f"v_cvt_pk_bf16_f32 {Q[3][i]}, {accQ[2*i]}, {accQ[2*i+1]}")
    A("s_mov_b64 exec, 0xffffffff")
    for i in (6, 7): A(f"v_cvt_pk_bf16_f32 {Q[3][i]}, {accQ[2*i]}, {accQ[2*i+1]}")
    A("s_mov_b64 exec, -1")
    A(f"ds_write_b128 {vRw}, {Q[3][0:4]}"); A(f"ds_write_b128 {vRw}, {Q[3][4:8]} offset:1024")
    A(f"s_cmp_eq_u32 s{DONE}, 1"); A(f"s_cbranch_scc1 L_{N}_havekv")
    A("s_waitcnt vmcnt(1)")
    spin("pollKV", kvld)
    for it in first_kv: emit(it)
    A(f"s_waitcnt vmcnt({len(first_kv)})")
    A(f"s_branch L_{N}_havekv2")
    A.label(f"L_{N}_havekv")
    A(f"s_waitcnt vmcnt({nafter})")
    A.label(f"L_{N}_havekv2")
    STc("kvseen")
    A(f"v_mov_b32 {t2}, {accP[12]}")
    A("s_waitcnt lgkmcnt(0)")
    A("s_barrier")
    A(f"v_permlane32_swap_b32 {accP[12]}, {t2}")
    for j in range(3):
        for st in range(2): A(f"ds_read_b128 {Q[j][4*st:4*st+4]}, {vQr[j]} offset:{st*1024}")
    A(f"s_cmp_lg_u32 s{W_}, 0"); A(f"s_cbranch_scc1 L_{N}_nofb")
    for x in flag_store(FLB): A(x)
    A.label(f"L_{N}_nofb")
    A(f"v_mul_f32 {t2}, {hx(f32bits(-LOG2E))}, {t2}"); A(f"v_exp_f32 {t2}, {t2}")
    po = phi_ops(accP, ftmp)
    for x in po[:4]: A(x)
    A(f"v_add_f32 {t2}, 1.0, {t2}"); A(f"v_rcp_f32 {vg}, {t2}")
    for x in po[4:]: A(x)
    for i in range(6): A(f"v_cvt_pk_bf16_f32 {pq[i]}, {accP[2*i]}, {accP[2*i+1]}")
    A("s_mov_b64 exec, 0xffffffff")
    for i in (6, 7): A(f"v_cvt_pk_bf16_f32 {pq[i]}, {accP[2*i]}, {accP[2*i+1]}")
    A("s_mov_b64 exec, -1")

    order = [(n, j) for n in range(0, 16 - QM) for j in range(4)] + [(n, j) for j in range(4) for n in range(16 - QM, 16)]
    firstO = set()
    def qk(t, st):
        n, j = order[t]
        return (f"{MFMA} {Sb[t&1]}, {KVr[n%NB][4*st:4*st+4]}, {Q[j][4*st:4*st+4]}, {'0' if st == 0 else Sb[t&1]}", [f"K{n}"])
    def pv(t, st):
        n, j = order[t]
        c = O[j] if j in firstO else "0"
        firstO.add(j)
        return (f"{MFMA} {O[j]}, {KVr[n%NB][8+4*st:12+4*st]}, {P[4*st:4*st+4]}, {c}", [f"V{n}"])
    ex = lambda t, i: f"v_exp_f32 {Sb[t&1][i]}, {Sb[t&1][i]}"
    cv = lambda t, i: f"v_cvt_pk_bf16_f32 {P[i]}, {Sb[t&1][2*i]}, {Sb[t&1][2*i+1]}"
    slots = []
    for t in range(64):
        slots.append((qk(t+1, 0) if t < 63 else None, [ex(t, i) for i in range(0, 4)]))
        slots.append((qk(t+1, 1) if t < 63 else None, [cv(t, 0), cv(t, 1)] + [ex(t, i) for i in range(4, 8)]))
        slots.append((pv(t-1, 1) if t > 0 else None, [cv(t, 2), cv(t, 3)] + [ex(t, i) for i in range(8, 12)]))
        slots.append((pv(t, 0), [cv(t, 4), cv(t, 5)] + [ex(t, i) for i in range(12, 16)] + [cv(t, 6), cv(t, 7)]))
    hi, lo, fix, mid = [], [], {}, {}
    def at(slot, items): fix.setdefault(slot, []).extend(items)
    lastK = {n: max(4*(t-1)+1 for t in range(64) if order[t][0] == n) for n in range(16)}
    lastV = {n: max(4*(t+1)+2 for t in range(64) if order[t][0] == n) for n in range(16)}
    for n in range(nfirst, 16):
        p = n - NB
        eK = max(lastK[p] if p >= 0 else 0, (n - NB + 1) * 16); eV = max(lastV[p] if p >= 0 else 0, eK)
        hi.append((eK, ldk(n))); hi.append((eV, ldv(n)))
    fbld = f"buffer_load_dword {vfl}, {vfb}, s[{sW}:{sW+3}], 0 offen sc1"
    hi.append(((bchk - 3) * 4, [[fbld, "VM:fbld"]]))
    (hi if pf_hi else lo).append((pf_at * 4 + 1, [[f"global_load_dword {t2}, {vpf}, s[{PFP}:{PFP+1}] offset:{p_*13*128 if p_ < 2 else 0}", "VM:pf"] + ([f"v_add_u32 {vpf}, {26*128}, {vpf}"] if p_ == 1 else []) +
                               ([f"v_add_u32 {vpf}, {10*128}, {vpf}"] if p_ == 2 else []) for p_ in range(4)]))
    lo.append((bchk * 4 + 2, [[f"buffer_store_dwordx4 {obuf[0:4]}, {vL16}, s[{sW}:{sW+3}], s{OAS} offen offset:{st*1024} sc1", "VM:ost"] for st in range(2)]))
    at(bchk * 4, ["CHK:fbld:1", "WAIT:fbld", f"SPIN:pollP:{fbld}"])
    def ld16(dst, va, tag):
        return [[gl(dst[4*b:4*b+4], va, (b % 8)*1024 - 4096), f"VM:{tag}"] + ([f"v_add_u32 {va}, 0x2000, {va}"] if b == 7 else []) for b in range(16)]
    fast = ld16(stg, vKP, "kvp")
    lo.append((bchk * 4 + 1, fast))
    wl = []
    for br, srd_ in ((0, sB), (1, sA)):
        for q in range(14):
            if q % 4 == 0: wl.append([f"s_add_u32 m0, s{WL}, {L_WO + br*WO_IMG + q*1024}"])
            wl.append([f"buffer_load_dwordx4 {vWo[q%4]}, s[{srd_}:{srd_+3}], s{WOS[q//4]} offen offset:{(q%4)*1024} lds", "VM:wo"])
    lo.append(((wo_at or bchk) * 4 + 3, wl))
    s0 = bb * 4
    adds = [f"v_add_f32 {stg[i]}, {stg[i]}, {stg[lvl+i]}" for lvl in (32, 16, 8, 4) for i in range(lvl)]
    at(s0, ["CHK:kvp:16", "WAIT:kvp"])
    for k in range(8): at(s0 + k, adds[8*k:8*k+8])
    at(s0 + 8, [f"v_cvt_pk_bf16_f32 {tp[0]}, {stg[0]}, {stg[1]}", f"v_cvt_pk_bf16_f32 {tp[1]}, {stg[2]}, {stg[3]}"])
    at(s0 + 10, [f"ds_write_b64 {vKX}, {tp}"])
    at(s0 + 12, ["s_waitcnt lgkmcnt(0)", "s_barrier"])
    at(s0 + 14, [f"ds_read_b128 {stg[4:8]}, {vL16} offset:{L_KVX}", f"ds_read_b128 {stg[8:12]}, {vL16} offset:{L_KVX+1024}"])
    num = stg[16:32]
    at(s0 + 18, ["s_waitcnt lgkmcnt(0)"])
    mid[s0 + 19] = f"{MFMA} {num}, {stg[4:8]}, {pq[0:4]}, 0"
    mid[s0 + 23] = f"{MFMA} {num}, {stg[8:12]}, {pq[4:8]}, {num}"
    at(s0 + 20, ["s_barrier"])
    s1 = s0 + 4
    at(s1 + 22, [f"v_mov_b32 {t1}, {num[12]}", f"v_sub_f32 {t3}, 1.0, {vg}"])
    at(s1 + 23, [f"v_permlane32_swap_b32 {num[12]}, {t1}", f"v_add_f32 {t1}, {hx(f32bits(1e-6))}, {t1}", f"v_rcp_f32 {t1}, {t1}"])
    at(s1 + 24, [f"v_mul_f32 {t1}, {t1}, {t3}"])
    for k in range(4): at(s1 + 24 + k, [f"v_mul_f32 {num[i]}, {t1}, {num[i]}" for i in range(4*k, 4*k+4)])
    cvo = lambda acc_, i: f"v_cvt_pk_bf16_f32 {obuf[i]}, {acc_[2*i]}, {acc_[2*i+1]}"
    at(s1 + 28, ["CHK:ost:2"] + [cvo(num, i) for i in range(6)] + ["s_mov_b64 exec, 0xffffffff", cvo(num, 6), cvo(num, 7), "s_mov_b64 exec, -1"])
    hi.append((s1 + 29, [[f"buffer_store_dwordx4 {obuf[4*st:4*st+4]}, {vL16}, s[{sW}:{sW+3}], s{OBS} offen offset:{1024*st} sc1", "VM:ost"] for st in range(2)]))
    at(s1 + 30 + 4*flag_lag, ["CHK:ost:4", "WAIT:ost"] + flag_store(FLO) + ["VM:fl"])
    flld = f"buffer_load_dword {vfl}, {vft}, s[{sW}:{sW+3}], 0 offen sc1"
    hi.append(((poll_at - 3) * 4, [[flld, "VM:flld"]]))
    at(poll_at * 4, ["CHK:flld:1", "WAIT:flld", f"SPIN:pollB:{flld}"])
    front = {poll_at * 4 + 1: ld16(oBf, vOT, "oB")}
    for j in range(3):
        tl = max(t for t in range(64) if order[t][1] == j)
        at((tl + 1) * 4 + 3, [f"v_add_u32 {vRw}, s{RED[j]}, {vL16}"])
        for q in range(4): at((tl + 1) * 4 + 4 + q, [f"ds_write_b128 {vRw}, {O[j][4*q:4*q+4]} offset:{j*4096 + q*1024}"])
        if j == 2:
            b_ = (tl + 1) * 4 + 8
            at(b_, ["s_waitcnt lgkmcnt(0)", "s_barrier"])
            rd = [f"ds_read_b128 {stg[16*jj+4*q:16*jj+4*q+4]}, {vRr} offset:{jj*4096 + q*1024}" for jj in range(3) for q in range(4)]
            for u in range(3): at(b_ + 1 + u, rd[4*u:4*u+4])
    hi.sort(key=lambda e: e[0]); lo.sort(key=lambda e: e[0])
    ph, pl = deque(), deque()

    A(f"s_waitcnt vmcnt({vm.wait_for('K0')}) lgkmcnt(0)"); A(qk(0, 0)[0]); A(qk(0, 1)[0])
    ST("first")
    if clk: ST("rtF", True)
    A("s_nop 10")
    lastvm = -99; gen.log = {}
    for i, (mf, valu) in enumerate(slots):
        if fine and i % 16 == 0 and (i // 16) in fine: ST(f"t{i//4}")
        while hi and hi[0][0] <= i: ph.extend(hi.pop(0)[1])
        while lo and lo[0][0] <= i: pl.extend(lo.pop(0)[1])
        if i in front: pl.extendleft(reversed(front.pop(i)))
        if mf is not None:
            for tg in mf[1]: assert issued.get(tg) == 2, (i, tg)
            n = vm.wait_for(mf[1])
            if n is not None: A(f"s_waitcnt vmcnt({n})")
            A(mf[0])
        fx = fix.pop(i, [])
        isvm = lambda it: any(x.startswith("VM:") for x in it)
        need = [tg for d_ in ((1, 2) if i % 2 == 0 else (1,)) if i + d_ < len(slots) and slots[i+d_][0] is not None for tg in slots[i+d_][0][1]]
        need = [tg for tg in need if tg in vm.q and issued.get(tg) == 2]
        if need:
            A(f"s_waitcnt vmcnt({vm.wait_for(need)})")
        elif any(not x.startswith(("v_", "CHK:")) for x in fx[:2]): pass
        else:
            for dq in (ph, pl):
                if dq and (not isvm(dq[0]) or (i - lastvm >= pace and (i % 2 == 1 or pace == 1 or i - lastvm > 2)) or (kvp_hi and pl and 'VM:kvp' in pl[0] and i % 4 != 0)):
                    it = dq.popleft()
                    if isvm(it): lastvm = i; gen.log[[x for x in it if x.startswith('VM:')][0][3:]] = i
                    emit(it); break
                if dq and dq is ph and pl and not isvm(pl[0]):
                    emit(pl.popleft()); break
                if dq: break
        for x in fx:
            if x.startswith("CHK:"):
                _, tg, c = x.split(":"); assert issued.get(tg) == int(c), (i, x, issued)
            else: emit([x])
        if i in mid:
            for x in valu[:4]: A(x)
            A(mid.pop(i))
            for x in valu[4:]: A(x)
        else:
            for x in valu: A(x)
    assert not hi and not lo and not fix and not mid and not ph, (hi, lo, fix, mid, ph)
    A("s_nop 1")
    A(pv(63, 1)[0])
    gen.leftover = len(pl)
    while pl: emit(pl.popleft())
    ST("loop")
    if clk: ST("rtL", True)

    def norm_store(acc_, gfac, base):
        for i in range(0, 16, 2): A(f"v_pk_mul_f32 {acc_[i:i+2]}, {acc_[i:i+2]}, {tp} op_sel_hi:[1,0]")
        for i in range(4): A(cvo(acc_, i))
        A(f"buffer_store_dwordx4 {obuf[0:4]}, {vL16}, s[{sW}:{sW+3}], s{base} offen sc1")
        for i in (4, 5): A(cvo(acc_, i))
        A("s_mov_b64 exec, 0xffffffff")
        for i in (6, 7): A(cvo(acc_, i))
        A("s_mov_b64 exec, -1")
        A(f"buffer_store_dwordx4 {obuf[4:8]}, {vL16}, s[{sW}:{sW+3}], s{base} offen offset:1024 sc1")
    def reduce_norm(check):
        if not check:
            for j in range(3):
                for q in range(4): A(f"ds_read_b128 {stg[16*j+4*q:16*j+4*q+4]}, {vRr} offset:{j*4096 + q*1024}")
        A("s_waitcnt lgkmcnt(4)")
        for i in range(0, 16, 2): A(f"v_pk_add_f32 {stg[i:i+2]}, {stg[i:i+2]}, {stg[16+i:18+i]}")
        A("s_waitcnt lgkmcnt(0)")
        for i in range(0, 16, 2): A(f"v_pk_add_f32 {stg[i:i+2]}, {stg[i:i+2]}, {stg[32+i:34+i]}")
        for i in range(0, 16, 2): A(f"v_pk_add_f32 {O[3][i:i+2]}, {O[3][i:i+2]}, {stg[i:i+2]}")
        A(f"v_mov_b32 {t1}, {O[3][12]}")
        if check:
            A(f"v_pk_mul_f32 {tp}, {O[3][0:2]}, 0")
            for i in range(2, 16, 2): A(f"v_pk_fma_f32 {tp}, {O[3][i:i+2]}, 0, {tp}")
        else: A("s_nop 1")
        A(f"v_permlane32_swap_b32 {O[3][12]}, {t1}")
        if check:
            A(f"v_add_f32 {t2}, {tp[0]}, {tp[1]}")
            A(f"v_add_f32 {t2}, {t2}, {t1}")
            lo_, hi_ = (2.0**-60, 2.0**60) if not force_fallback else (2.0**30, 2.0**60)
            A(f"v_cmp_le_f32 vcc, {hx(f32bits(lo_))}, {t2}")
            A(f"s_mov_b32 s{T1}, {hx(f32bits(hi_))}")
            A(f"v_cmp_ge_f32 s[50:51], s{T1}, {t2}")
        A(f"v_rcp_f32 {t1}, {t1}")
        if check:
            A("s_and_b64 vcc, vcc, s[50:51]")
            A("s_cmp_eq_u64 vcc, -1")
            A(f"s_cselect_b32 s{OK}, 1, 0")
        else: A("s_nop 0")
        A(f"v_mul_f32 {tp[0]}, {t1}, {vg}")
    reduce_norm(True)
    A(f"s_cbranch_scc0 L_{N}_vote")
    norm_store(O[3], t1, OAS)
    A.label(f"L_{N}_vote")
    STc("pub")
    A(f"v_mov_b32 {t1}, s{OK}"); A(f"v_and_b32 {t2}, 3, {lane}"); A(f"v_mul_u32_u24 {t2}, 12288, {t2}")
    A("s_mov_b64 exec, 1")
    A(f"ds_write_b32 {vRr}, {t1}")
    A("s_mov_b64 exec, -1")
    A("s_waitcnt vmcnt(2) lgkmcnt(0)")
    A("s_barrier")
    A(f"ds_read_b32 {t0}, {t2}")
    A("s_waitcnt lgkmcnt(0)")
    A(f"v_cmp_eq_u32 vcc, 0, {t0}")
    A(f"s_cbranch_vccnz L_{N}_fb")
    A.label(f"L_{N}_tail")
    A(f"s_cmp_ge_u32 s{IDX}, 28")
    A(f"s_cbranch_scc1 L_{N}_exit")
    def wo_reads(dst, br, k, c):
        hl, st = k >> 1, k & 1
        o = (28*hl + 16*st) * 128
        a2 = vWr[4 + c] if (br == 1 and k == 15) else vWr[2*br + c]
        return [f"ds_read_b64_tr_b16 {dst[0:2]}, {vWr[2*br + c]} offset:{o}", f"ds_read_b64_tr_b16 {dst[2:4]}, {a2} offset:{o+1024}"]
    accB = [stg[0:16], stg[16:32]]; accA = [big[64:80], big[80:96]]
    wt = [stg[32+4*i:36+4*i] for i in range(4)]
    seq = [(k, c) for k in range(16) for c in range(2)]
    oAf = big[0:64]
    A(f"v_add_u32 {vOT}, {hx(WS_OA - WS_OB - 0x2000)}, {vOT}"); A(f"v_add_u32 {t3}, 0x2000, {vOT}")
    A(f"s_mov_b32 s{CNT}, 0")
    def loadA():
        return [[gl(oAf[4*k:4*k+4], vOT if k < 8 else t3, (k % 8)*1024 - 4096)] for k in range(16)]
    la = loadA()
    for u in range(3):
        for x in wo_reads(wt[u], 0, *seq[u]): A(x)
    for u, (k, c) in enumerate(seq):
        for x in wo_reads(wt[(u+3) % 4], (u + 3) // 32, *seq[(u+3) % 32]): A(x)
        A("s_waitcnt lgkmcnt(6)")
        A(f"{MFMA} {accB[c]}, {wt[u % 4]}, {oBf[4*k:4*k+4]}, {'0' if k == 0 else accB[c]}")
        if u >= aload_at:
            for _ in range(2):
                if la:
                    for x in la.pop(0): A(x)
    while la:
        for x in la.pop(0): A(x)
    STc("Bdone")
    A("s_nop 1")
    la = loadA()
    def check(hl):
        x = oAf[8*hl:8*hl+8]
        return [f"s_waitcnt vmcnt({14 - 2*hl})", f"v_max3_u32 {t1}, {x[0]}, {x[1]}, {x[2]}", f"v_max3_u32 {t0}, {x[3]}, {x[4]}, {x[5]}",
                f"v_max3_u32 {t1}, {t1}, {x[6]}, {x[7]}", f"v_max_u32 {t1}, {t1}, {t0}", f"v_cmp_eq_u32 vcc, -1, {t1}"]
    for x in check(0): A(x)
    for hl in range(8):
        A(f"s_cbranch_vccnz L_{N}_r{hl}")
        A.label(f"L_{N}_g{hl}")
        for u in range(4*hl, 4*hl + 4):
            k, c = seq[u]
            if u + 3 < 32:
                for y in wo_reads(wt[(u+3) % 4], 1, *seq[u+3]): A(y)
            A(f"s_waitcnt lgkmcnt({2*min(31-u, 3)})")
            A(f"{MFMA} {accA[c]}, {wt[u % 4]}, {oAf[4*k:4*k+4]}, {accB[c] if k == 0 else accA[c]}")
            if hl < 7 and u % 4 == 2:
                for y in check(hl + 1)[:3]: A(y)
            if hl < 7 and u % 4 == 3:
                for y in check(hl + 1)[3:]: A(y)
    def retries():
        for hl in range(8):
            A.label(f"L_{N}_r{hl}")
            A(f"s_add_u32 s{CNT}, s{CNT}, 1")
            A(f"s_cmp_gt_u32 s{CNT}, {SPIN}")
            A(f"s_cbranch_scc1 L_{N}_g{hl}")
            for it in la[2*hl:]: A(it[0])
            for y in check(hl): A(y)
            A(f"s_cbranch_vccnz L_{N}_r{hl}")
            A(f"s_branch L_{N}_g{hl}")
    A.label(f"L_{N}_store")
    STc("Adone")
    A(f"s_xor_b32 s{T0}, s{W_}, 2"); A(f"s_mul_i32 s{T0}, s{T0}, 12288"); A(f"v_add_u32 {t2}, s{T0}, {vL16}")
    A("s_nop 8")
    for q in range(4): A(f"ds_write_b128 {vRr}, {accA[1][4*q:4*q+4]} offset:{4096 + q*1024}")
    A("s_waitcnt lgkmcnt(0)")
    A("s_barrier")
    for q in range(4): A(f"ds_read_b128 {stg[4*q:4*q+4]}, {t2} offset:{4096 + q*1024}")
    for q in range(4):
        A(f"s_waitcnt lgkmcnt({3-q})")
        for i in (4*q, 4*q+2): A(f"v_pk_add_f32 {accA[0][i:i+2]}, {accA[0][i:i+2]}, {stg[i:i+2]}")
        for i in (2*q, 2*q+1): A(cvo(accA[0], i))
        if q & 1:
            p = 2*q - 2
            A("s_nop 1")
            A(f"v_permlane32_swap_b32 {obuf[p]}, {obuf[p+2]}")
            A(f"v_permlane32_swap_b32 {obuf[p+1]}, {obuf[p+3]}")
            A(f"buffer_store_dwordx4 {obuf[p:p+4]}, {vOut}, s[{sO}:{sO+3}], s{OUTA} offen offset:{8*p} {outsc}")
    A(f"s_or_b32 s{T0}, s2, s{W_}"); A(f"s_cmp_lg_u32 s{T0}, 0"); A(f"s_cbranch_scc1 L_{N}_exit")
    A(f"v_mov_b32 {t2}, {hx(WS_EP)}"); A(f"v_mov_b32 {t1}, s{TAG}"); A("s_mov_b64 exec, 1")
    A(f"buffer_store_dword {t1}, {t2}, s[{sW}:{sW+3}], 0 offen sc1")
    A("s_mov_b64 exec, -1")
    A.label(f"L_{N}_exit")
    if stamps:
        A("s_waitcnt vmcnt(0)"); ST("end"); ST("rt1", True); ST.flush(sW, W_, t0, t1, T0)
        A(f"v_mov_b32 {t1}, s{CNT}"); A(f"buffer_store_dword {t1}, {t0}, s[{sW}:{sW+3}], s{T0} offen offset:124")
        gen.names = ST.names
    A.label(f"L_{N}_end")
    A("s_endpgm")
    retries()

    A.label(f"L_{N}_fb")
    mx = pq[4:8]
    kf, vf = KVr[0][0:8], KVr[0][8:16]
    for j in range(4): A(f"v_mov_b32 {mx[j]}, 0xff800000")
    A(f"v_subrev_u32 {vKV}, {7*0x2000 + 4096}, {vKV}")
    def fb_loop(lbl, body, loadv):
        A(f"s_mov_b32 s{KO}, 0")
        A.label(lbl)
        for st in range(2): A(f"buffer_load_dwordx4 {kf[4*st:4*st+4]}, {vKV}, s[{sW}:{sW+3}], s{KO} offen offset:{st*1024} sc1")
        if loadv:
            for st in range(2): A(f"buffer_load_dwordx4 {vf[4*st:4*st+4]}, {vKV}, s[{sW}:{sW+3}], s{KO} offen offset:{2048+st*1024} sc1")
        A("s_waitcnt vmcnt(0)")
        for j in range(4):
            A(f"{MFMA} {Sb[0]}, {kf[0:4]}, {Q[j][0:4]}, 0")
            A(f"{MFMA} {Sb[0]}, {kf[4:8]}, {Q[j][4:8]}, {Sb[0]}")
            A("s_nop 11")
            body(j)
        A(f"s_add_u32 s{KO}, s{KO}, 4096")
        A(f"s_cmp_lt_u32 s{KO}, 0x10000")
        A(f"s_cbranch_scc1 {lbl}")
    def body_max(j):
        for i in range(0, 16, 2): A(f"v_max3_f32 {mx[j]}, {mx[j]}, {Sb[0][i]}, {Sb[0][i+1]}")
    fb_loop(f"L_{N}_fbmax", body_max, False)
    for j in range(4):
        A(f"s_add_u32 s{T0}, s{W_}, {j+1}"); A(f"s_and_b32 s{T0}, s{T0}, 3"); A(f"s_lshl_b32 s{T0}, s{T0}, 2"); A(f"s_add_u32 s{T0}, s{T0}, s{W_}"); A(f"s_lshl_b32 s{T0}, s{T0}, 8")
        A(f"v_lshl_add_u32 {t0}, {lane}, 2, s{T0}")
        A(f"ds_write_b32 {t0}, {mx[j]} offset:{L_MAX}")
    A("s_waitcnt lgkmcnt(0)")
    A("s_barrier")
    A(f"v_and_b32 {t2}, 31, {lane}")
    for j in range(4):
        A(f"s_add_u32 s{T0}, s{W_}, {j+1}"); A(f"s_and_b32 s{T0}, s{T0}, 3"); A(f"s_lshl_b32 s{T0}, s{T0}, 10")
        A(f"v_lshl_add_u32 {t0}, {t2}, 2, s{T0}")
        for i in range(8): A(f"ds_read_b32 {Sb[0][i]}, {t0} offset:{L_MAX + i*128}")
        A("s_waitcnt lgkmcnt(0)")
        A(f"v_max3_f32 {t1}, {Sb[0][0]}, {Sb[0][1]}, {Sb[0][2]}"); A(f"v_max3_f32 {t1}, {t1}, {Sb[0][3]}, {Sb[0][4]}")
        A(f"v_max3_f32 {t1}, {t1}, {Sb[0][5]}, {Sb[0][6]}"); A(f"v_max_f32 {t1}, {t1}, {Sb[0][7]}")
        A(f"v_sub_f32 {t1}, 0, {t1}")
        A(f"v_cvt_pk_bf16_f32 {t3}, {t1}, {t1}"); A(f"v_and_b32 {tp[0]}, 0xffff0000, {t3}"); A(f"v_sub_f32 {t1}, {t1}, {tp[0]}")
        A(f"v_cvt_pk_bf16_f32 {t3}, {t1}, {t1}"); A(f"v_and_b32 {tp[1]}, 0xffff0000, {t3}"); A(f"v_sub_f32 {t1}, {t1}, {tp[1]}")
        A("s_mov_b32 exec_lo, 0")
        A(f"v_cvt_pk_bf16_f32 {Q[j][6]}, {tp[0]}, {tp[1]}")
        A(f"v_cvt_pk_bf16_f32 {Q[j][7]}, {t1}, 0")
        A("s_mov_b32 exec_lo, -1")
    for j in range(4):
        for i in range(16): A(f"v_mov_b32 {O[j][i]}, 0")
    A("s_barrier")
    def body_pv(j):
        for i in range(16): A(f"v_exp_f32 {Sb[0][i]}, {Sb[0][i]}")
        A("s_nop 0")
        for i in range(8): A(f"v_cvt_pk_bf16_f32 {P[i]}, {Sb[0][2*i]}, {Sb[0][2*i+1]}")
        A("s_nop 1")
        A(f"{MFMA} {O[j]}, {vf[0:4]}, {P[0:4]}, {O[j]}")
        A(f"{MFMA} {O[j]}, {vf[4:8]}, {P[4:8]}, {O[j]}")
    fb_loop(f"L_{N}_fbpv", body_pv, True)
    A("s_nop 11")
    for j in range(3):
        A(f"v_add_u32 {vRw}, s{RED[j]}, {vL16}")
        for q in range(4): A(f"ds_write_b128 {vRw}, {O[j][4*q:4*q+4]} offset:{j*4096 + q*1024}")
    A("s_waitcnt lgkmcnt(0)")
    A("s_barrier")
    reduce_norm(False)
    A(f"s_cmp_eq_u32 s{OK}, 1")
    A(f"s_cbranch_scc1 L_{N}_tail")
    norm_store(O[3], t1, OAS)
    A(f"s_branch L_{N}_tail")
    txt = add_pads(A.text(), N, f"L_{N}_end") if pads else A.text().replace(".p2align 12", "")
    return txt, kernel_desc(name, 256, 256, 102 if stamps else 80), (V.high, AG.high)

if __name__ == "__main__":
    t, d, n = gen()
    print({k: v // 4 for k, v in gen.log.items()}); print("pads", add_pads.count); print("kf", n, "leftover", gen.leftover, "hazards", check_hazards(t), "lines", t.count("\n"))
```
